```python
import torch

def _softmax(x, axis=-1):
    return torch.softmax(x, dim=axis)
def _gelu(x):
    return torch.nn.functional.gelu(x, approximate="tanh")
def _silu(x):
    return torch.nn.functional.silu(x)
def _sigmoid(x):
    return torch.sigmoid(x)
def _layernorm(x, axis=-1, eps=1e-5):
    m = x.mean(dim=axis, keepdim=True)
    v = x.var(dim=axis, keepdim=True, unbiased=False)
    return (x - m) / torch.sqrt(v + eps)
def _scatter_add(tgt, idx, src, axis=0):
    return tgt.clone().index_add_(axis, idx, src)
def _segment_sum(src, seg, n):
    out = torch.zeros((n,) + src.shape[1:], dtype=src.dtype)
    return out.index_add_(0, seg, src)
def _pad(x, pw):
    flat = tuple(v for pair in reversed(pw) for v in pair)
    return torch.nn.functional.pad(x, flat)

kernel_name = 'interleave_layers__spectral_gfnet__linear_attn_block__prompt'

def setup_inputs():

    _w = (lambda a: (lambda t: t.to(torch.bfloat16) if t.is_floating_point() else t)(torch.as_tensor(a)))
    def _A_setup():
        B, S, D = 1, 2048, 576
        Df = D // 2 + 1
        return {
            "x": _w((lambda *s: torch.randn(*s, dtype=torch.bfloat16) * 0.05)(B, S, D)),
            "w_r": _w((lambda *s: torch.randn(*s, dtype=torch.bfloat16) * 0.4)(S, Df) * 0.02),
            "w_i": _w((lambda *s: torch.randn(*s, dtype=torch.bfloat16) * 0.4)(S, Df) * 0.02),
        }
    _A_in = _A_setup()

    def _B_setup():
        B, S, D = 1, 2048, 576
        return {
            "x": _w((lambda *s: torch.randn(*s, dtype=torch.bfloat16) * 0.05)(B, S, D)),
            "wqkv": _w((lambda *s: torch.randn(*s, dtype=torch.bfloat16) * 0.05)(D, 3 * D)),
            "wo": _w((lambda *s: torch.randn(*s, dtype=torch.bfloat16) * 0.05)(D, D)),
        }
    _B_in = _B_setup()

    return {
        "A_x": _A_in["x"],
        "A_w_r": _A_in["w_r"],
        "A_w_i": _A_in["w_i"],
        "B_x": _B_in["x"],
        "B_wqkv": _B_in["wqkv"],
        "B_wo": _B_in["wo"],
    }

def reference(A_x, A_w_r, A_w_i, B_x, B_wqkv, B_wo):
    def _A_ref(x, w_r, w_i):
        B, S, D = x.shape
        X = (lambda x, axes=(-2,-1): torch.fft.rfft2(x.float(), dim=axes))(x, axes=(-2, -1))
        W = w_r + 1j * w_i
        X = X * W
        y = (lambda x, s, axes=(-2,-1): torch.fft.irfft2(x, s=s, dim=axes).to(torch.bfloat16))(X, (S, D), axes=(-2, -1))
        return y

    def _B_ref(x, wqkv, wo):
        B, S, D = x.shape
        H = 32; Dh = D // H
        qkv = (lambda x, *d: x.permute(*d))((x @ wqkv).reshape(B, S, 3, H, Dh), 2, 0, 3, 1, 4)
        q, k, v = qkv[0], qkv[1], qkv[2]
        phi = lambda t: torch.where(t > 0, t + 1, torch.exp(t)) + 1e-6
        pq, pk = phi(q), phi(k)
        kv = torch.einsum("bhsd,bhse->bhde", pk, v)
        z = torch.einsum("bhsd->bhd", pk)
        num = torch.einsum("bhqd,bhde->bhqe", pq, kv)
        den = torch.einsum("bhqd,bhd->bhq", pq, z)[..., None] + 1e-6
        o = num / den
        return (lambda x, *d: x.permute(*d))(o, 0, 2, 1, 3).reshape(B, S, D) @ wo

    x = A_x
    x = x + _A_ref(_layernorm(x, axis=-1), A_w_r, A_w_i)
    x = x + _B_ref(_layernorm(x, axis=-1), B_wqkv, B_wo)
    x = x + _A_ref(_layernorm(x, axis=-1), A_w_r, A_w_i)
    x = x + _B_ref(_layernorm(x, axis=-1), B_wqkv, B_wo)
    return x
```

```python
import re

REG_RE = re.compile(r'^(-|abs\()?([vsa])(\d+)\)?$')
RNG_RE = re.compile(r'^(-)?([vsa])\[(\d+):(\d+)\]$')
TRANS = ('v_exp_f32', 'v_log_f32', 'v_rcp_f32', 'v_rsq_f32', 'v_sqrt_f32', 'v_sin_f32', 'v_cos_f32')


def regs_of(tok):
    tok = tok.strip()
    m = REG_RE.match(tok)
    if m:
        return [(m.group(2), int(m.group(3)))]
    m = RNG_RE.match(tok)
    if m:
        return [(m.group(2), i) for i in range(int(m.group(3)), int(m.group(4)) + 1)]
    if tok == 'vcc':
        return [('vcc', 0)]
    if tok == 'exec':
        return [('exec', 0)]
    if tok == 'm0':
        return [('m0', 0)]
    return []


def split_ops(s):
    out, depth, cur = [], 0, ''
    for ch in s:
        if ch in '[(':
            depth += 1
        if ch in '])':
            depth -= 1
        if ch == ',' and depth == 0:
            out.append(cur.strip())
            cur = ''
        else:
            cur += ch
    if cur.strip():
        out.append(cur.strip())
    return out


class Ins:
    def __init__(self, text, tag=None):
        self.text = text
        self.tag = tag
        t = text.split(';')[0].strip()
        self.label = t.endswith(':')
        self.directive = t.startswith('.') and not self.label
        self.op = t.split()[0] if t else ''
        rest = t[len(self.op):].strip()
        ops = split_ops(rest)
        mods = ''
        if ops:
            parts = ops[-1].split(None, 1)
            ops[-1] = parts[0]
            mods = parts[1] if len(parts) > 1 else ''
        self.ops = ops
        self.mods = mods
        self.rd, self.wr = [], []
        self.kind = 'other'
        op = self.op
        R = regs_of
        if self.label or self.directive or not op:
            self.kind = 'none'
        elif op.startswith('v_mfma'):
            self.kind = 'mfma'
            self.wr = R(ops[0])
            self.A, self.B, self.C = R(ops[1]), R(ops[2]), R(ops[3])
            self.rd = self.A + self.B + self.C
            self.passes = 8 if '32x32x16' in op or '32x32x8' in op else 4
        elif op.startswith('v_'):
            self.kind = 'valu'
            if op.startswith('v_swap') or op.startswith('v_permlane'):
                self.wr = R(ops[0]) + R(ops[1])
                self.rd = list(self.wr)
            elif op.startswith('v_nop'):
                pass
            elif op.startswith(('v_add_co', 'v_sub_co', 'v_addc_co', 'v_subb_co')):
                self.wr = R(ops[0]) + R(ops[1])
                for o in ops[2:]:
                    self.rd += R(o)
            else:
                self.wr = R(ops[0])
                for o in ops[1:]:
                    self.rd += R(o)
                if op.startswith(('v_fmac', 'v_dot2c', 'v_mac', 'v_writelane')) or '_dpp' in op:
                    self.rd += R(ops[0])
        elif op.startswith('ds_'):
            self.kind = 'ds'
            if op.startswith(('ds_read', 'ds_bpermute', 'ds_permute', 'ds_swizzle')):
                self.wr = R(ops[0])
                for o in ops[1:]:
                    self.rd += R(o)
                if 'd16' in op:
                    self.rd += R(ops[0])
            else:
                for o in ops:
                    self.rd += R(o)
        elif op.startswith(('buffer_', 'global_')):
            self.kind = 'vmem'
            self.is_lds = ' lds' in (' ' + mods) or '_lds_' in op
            if op.startswith(('buffer_load', 'global_load')) and not self.is_lds:
                self.wr = R(ops[0])
                for o in ops[1:]:
                    self.rd += R(o)
                if 'd16' in op:
                    self.rd += R(ops[0])
            else:
                for o in ops:
                    self.rd += R(o)
                if self.is_lds:
                    self.rd.append(('m0', 0))
            self.wide_store = op.startswith(('buffer_store_dwordx3', 'buffer_store_dwordx4',
                                             'global_store_dwordx3', 'global_store_dwordx4'))
            if self.wide_store:
                self.sdata = R(ops[0]) if op.startswith('buffer') else R(ops[1])
        elif op.startswith(('s_load', 's_memrealtime', 's_memtime', 's_buffer_load')):
            self.kind = 'smem'
            self.wr = R(ops[0])
            for o in ops[1:]:
                self.rd += R(o)
        elif op.startswith('s_'):
            self.kind = 'salu'
            if op.startswith(('s_cmp', 's_cbranch', 's_branch', 's_waitcnt', 's_nop', 's_barrier',
                              's_endpgm', 's_setprio', 's_sleep', 's_bitcmp', 's_setpc')):
                for o in ops:
                    self.rd += R(o)
            else:
                self.wr = R(ops[0])
                for o in ops[1:]:
                    self.rd += R(o)
                if 'saveexec' in op:
                    self.wr.append(('exec', 0))
        self.rds, self.wrs = set(self.rd), set(self.wr)

    def states(self):
        if self.kind == 'none':
            return 0
        if self.op == 's_nop':
            return int(self.ops[0], 0) + 1
        return 1


def required(p, c):
    need = 0
    if p.kind == 'valu':
        vw = {r for r in p.wrs if r[0] in 'va'}
        sw = {r for r in p.wrs if r[0] in ('s', 'vcc')}
        if c.kind == 'mfma' and vw & c.rds:
            need = max(need, 2)
        if c.kind == 'valu':
            if p.op in TRANS and vw & c.rds:
                need = max(need, 1)
            if sw & c.rds:
                need = max(need, 4 if c.op.startswith(('v_readlane', 'v_writelane')) else 2)
            if c.op.startswith(('v_readlane', 'v_readfirstlane')) and vw & c.rds:
                need = max(need, 1)
            if ('_dpp' in c.op or c.op.startswith('v_permlane')) and vw & c.rds:
                need = max(need, 2)
            if ('op_sel' in p.mods or 'sdwa' in p.op) and vw & (c.rds | c.wrs):
                need = max(need, 1)
            if p.op.startswith('v_dot') and vw & (c.rds | c.wrs):
                if not (c.op == p.op and vw & c.wrs and not (vw & set(regs_of(c.ops[1]) + regs_of(c.ops[2])))):
                    need = max(need, 3)
        if p.op.startswith('v_dot') and c.kind in ('vmem', 'ds', 'mfma') and vw & c.rds:
            need = max(need, 3)
        if p.op in TRANS and c.kind in ('vmem', 'ds') and vw & c.rds:
            need = max(need, 1)
        if c.kind == 'vmem' and sw & c.rds:
            need = max(need, 5)
        if c.kind == 'salu' and sw & c.rds:
            need = max(need, 1)
        if ('exec', 0) in p.wrs:
            need = max(need, 5)
    if p.kind == 'mfma':
        big = 12 if p.passes == 8 else 8
        if c.kind == 'mfma':
            if p.wrs & (set(c.A) | set(c.B)):
                need = max(need, big)
            if p.wrs & set(c.C):
                if not (p.wr == c.C and p.passes == c.passes):
                    need = max(need, big - 2)
            elif p.wrs & c.wrs and p.wr != c.wr:
                need = max(need, big)
            elif p.wrs & c.wrs:
                need = max(need, big)
        elif c.kind in ('valu', 'vmem', 'ds'):
            if p.wrs & (c.rds | c.wrs):
                need = max(need, big)
            if c.kind == 'valu' and set(p.C) & c.wrs:
                need = max(need, 7 if p.passes == 8 else 3)
            if c.kind in ('vmem', 'ds') and set(p.C) & c.wrs:
                need = max(need, 7 if p.passes == 8 else 3)
    if p.kind == 'vmem' and getattr(p, 'wide_store', False):
        if set(p.sdata) & c.wrs:
            need = max(need, 2)
    if p.kind == 'salu' and ('m0', 0) in p.wrs and ('m0', 0) in c.rds and c.kind == 'vmem':
        need = max(need, 1)
    return need


class Kern:
    def __init__(self, name):
        self.name = name
        self.ins = []
        self.auto = True

    def __call__(self, text, tag=None):
        for line in text.strip().split('\n'):
            line = line.strip()
            if line:
                i = Ins(line, tag)
                i.auto = self.auto
                self.ins.append(i)
        return self.ins[-1]

    def wait_vm(self, tok):
        i = Ins('s_waitcnt vmcnt(?)')
        i.wait_tok = tok
        i.auto = self.auto
        self.ins.append(i)

    def finalize(self):
        out = []
        vm, lg = [], []

        def emit(i):
            out.append(i)

        def do_wait(vmn=None, lgn=None):
            parts = []
            if vmn is not None:
                parts.append('vmcnt(%d)' % min(vmn, 63))
                del vm[:max(0, len(vm) - vmn)]
            if lgn is not None:
                parts.append('lgkmcnt(%d)' % min(lgn, 15))
                del lg[:max(0, len(lg) - lgn)]
            emit(Ins('s_waitcnt ' + ' '.join(parts)))

        for i in self.ins:
            if hasattr(i, 'wait_tok'):
                if i.wait_tok in vm:
                    k = vm.index(i.wait_tok)
                    n = len(vm) - 1 - k
                    if n <= 62:
                        do_wait(vmn=n)
                    else:
                        raise Exception('vmcnt overflow wait')
                continue
            if i.op == 's_waitcnt':
                m = re.search(r'vmcnt\((\d+)\)', i.text)
                if m:
                    n = int(m.group(1))
                    del vm[:max(0, len(vm) - n)]
                m = re.search(r'lgkmcnt\((\d+)\)', i.text)
                if m:
                    n = int(m.group(1))
                    del lg[:max(0, len(lg) - n)]
                emit(i)
                continue
            if i.kind != 'none' and i.auto:
                touch = i.rds | i.wrs
                vmn = lgn = None
                for k, p in enumerate(vm):
                    if p.wrs & touch:
                        vmn = len(vm) - 1 - k
                for k, p in enumerate(lg):
                    if p.wrs & touch:
                        lgn = len(lg) - 1 - k
                if lgn is not None and any(p.kind == 'smem' for p in lg):
                    lgn = 0
                if lgn is not None and lgn > 15:
                    lgn = 15
                if vmn is not None and vmn > 63:
                    vmn = 63
                if vmn is not None or lgn is not None:
                    do_wait(vmn, lgn)
            if i.kind != 'none':
                dist = 0
                pad = 0
                for p in reversed(out):
                    if dist >= 20:
                        break
                    if p.kind != 'none':
                        r = required(p, i)
                        if r - dist > pad:
                            pad = r - dist
                    dist += p.states()
                while pad > 0:
                    n = min(pad, 16)
                    emit(Ins('s_nop %d' % (n - 1)))
                    pad -= n
            emit(i)
            if i.kind == 'vmem':
                vm.append(i)
                assert len(vm) <= 63 or not i.auto, 'too many outstanding vmem ops at: ' + i.text
            if i.kind in ('ds', 'smem'):
                lg.append(i)
        self.out = out
        return out

    def maxregs(self):
        mv = ma = ms = -1
        for i in self.out:
            for k, n in i.rds | i.wrs:
                if k == 'v':
                    mv = max(mv, n)
                if k == 'a':
                    ma = max(ma, n)
                if k == 's':
                    ms = max(ms, n)
        return mv + 1, ma + 1, ms + 1

    def text(self):
        return '\n'.join(('' if i.label else '    ') + i.text for i in self.out)


def vr(a, n=1, k='v'):
    return '%s%d' % (k, a) if n == 1 else '%s[%d:%d]' % (k, a, a + n - 1)


def ar(a, n=1):
    return vr(a, n, 'a')


def sr(a, n=1):
    return vr(a, n, 's')


class Alloc:
    def __init__(self, start=0, limit=256):
        self.p = start
        self.limit = limit

    def __call__(self, n=1, align=None):
        if align is None:
            align = 1 if n == 1 else (2 if n < 4 else 4)
        self.p = (self.p + align - 1) // align * align
        r = self.p
        self.p += n
        assert self.p <= self.limit, 'out of registers'
        return r
```

```python
from asmlib import *
from layout import *


def tsop(opts):
    return 's_memtime' if opts.get('ts') == 'cyc' else 's_memrealtime'


def prologue(k, nwg, opts):
    k('s_cmp_ge_u32 s2, %d' % nwg)
    k('s_cbranch_scc1 L_%s_end' % k.name)
    if opts.get('ts'):
        k('%s s[76:77]' % tsop(opts))
        for i in range(78, 90, 2):
            k('s_mov_b64 s[%d:%d], 0' % (i, i + 1))
    k('s_load_dwordx2 s[4:5], s[0:1], 64')


def srd(k, d, off, size, base=4, extra=None):
    if off:
        k('s_add_u32 s%d, s%d, 0x%x' % (d, base, off))
        k('s_addc_u32 s%d, s%d, 0' % (d + 1, base + 1))
        if extra:
            k('s_add_u32 s%d, s%d, %s' % (d, d, extra))
            k('s_addc_u32 s%d, s%d, 0' % (d + 1, d + 1))
    elif extra:
        k('s_add_u32 s%d, s%d, %s' % (d, base, extra))
        k('s_addc_u32 s%d, s%d, 0' % (d + 1, base + 1))
    else:
        k('s_mov_b32 s%d, s%d' % (d, base))
        k('s_mov_b32 s%d, s%d' % (d + 1, base + 1))
    k('s_mov_b32 s%d, 0x%x' % (d + 2, size))
    k('s_mov_b32 s%d, 0x20000' % (d + 3))


def stamp(k, opts, i):
    if opts.get('ts'):
        k('%s s[%d:%d]' % (tsop(opts), 76 + 2 * i, 77 + 2 * i))
        k.nstamp = max(getattr(k, 'nstamp', 0), i)


def epilogue(k, opts, tsidx, endlabel=True):
    if opts.get('ts'):
        k('s_waitcnt vmcnt(0) lgkmcnt(0)')
        k('%s s[90:91]' % tsop(opts))
        k('s_load_dwordx2 s[92:93], s[0:1], 64')
        k('s_load_dword s96, s[0:1], 56')
        k('s_waitcnt lgkmcnt(0)')
        k('s_lshr_b32 s96, s96, 9')
        k('s_and_b32 s96, s96, 7')
        k('s_lshl_b32 s96, s96, 17')
        k('s_add_u32 s96, s96, 0x%x' % TS)
        k('s_add_u32 s92, s92, s96')
        k('s_addc_u32 s93, s93, 0')
        k('s_mov_b32 s94, 0x20000')
        k('s_mov_b32 s95, 0x20000')
        k('s_mov_b64 exec, 1')
        k('v_lshrrev_b32 v0, 6, v0')
        k('s_lshl_b32 s96, s2, 3')
        k('v_add_u32 v0, s96, v0')
        k('v_lshlrev_b32 v0, 6, v0')
        for q in range(4):
            for j in range(4):
                i = (4 * q + j) // 2
                if 0 < i < 7 and i > getattr(k, 'nstamp', 0):
                    k('v_mov_b32 v%d, 0' % (4 + j))
                else:
                    k('v_mov_b32 v%d, s%d' % (4 + j, 76 + 4 * q + j))
            k('buffer_store_dwordx4 v[4:7], v0, s[92:95], 0 offen offset:%d' % (16 * q))
    if endlabel:
        k('L_%s_end:' % k.name)
    k('s_endpgm')


HEADER = """; Kernarg layout for this problem (72 bytes, ptrs only, base s[0:1]):
"""


def build_file(kerns):
    s = HEADER
    for k in kerns:
        L = k.launch
        s += '; @launch kernel=%s grid=(%d,1,1) block=(%d,1,1) lds=%d\n' % (k.name, L['grid'], L['block'], L['lds'])
    s += '.amdgcn_target "amdgcn-amd-amdhsa--gfx950"\n.text\n'
    seen = []
    for k in kerns:
        if k in seen:
            continue
        seen.append(k)
        k.finalize()
        s += '.globl %s\n.p2align 8\n.type %s,@function\n%s:\n' % (k.name, k.name, k.name)
        s += k.text() + '\n'
    s += '.section .rodata,"a"\n'
    for k in seen:
        nv, na, ns = k.maxregs()
        nv = max(nv, 8)
        acc = (nv + 3) // 4 * 4
        s += '.p2align 6\n.amdhsa_kernel %s\n' % k.name
        s += '  .amdhsa_next_free_vgpr %d\n' % (acc + na if na else nv)
        s += '  .amdhsa_next_free_sgpr %d\n' % max(ns, 16)
        s += '  .amdhsa_accum_offset %d\n' % acc
        s += '  .amdhsa_group_segment_fixed_size 0\n  .amdhsa_kernarg_size 72\n  .amdhsa_user_sgpr_count 2\n'
        s += '  .amdhsa_user_sgpr_kernarg_segment_ptr 1\n  .amdhsa_system_sgpr_workgroup_id_x 1\n'
        s += '.end_amdhsa_kernel\n'
    return s
```

```python
from asmlib import *
from layout import *
from common import *

LDS_K1 = 80 * 1024
mf = 'v_mfma_f32_16x16x32_bf16'
OOB = 0x40000000


def gen_k1(name, opts, tsidx):
    k = Kern(name)
    N = name
    prologue(k, 252, opts)
    k('s_load_dwordx4 s[8:11], s[0:1], 0')
    k('s_load_dwordx2 s[12:13], s[0:1], 16')
    k('s_load_dwordx4 s[16:19], s[0:1], 32')
    V = Alloc(1)
    m, g, t0, t1, t2, lane16 = V(), V(), V(), V(), V(), V()
    k('v_lshrrev_b32 v%d, 6, v0' % t0)
    k('v_readfirstlane_b32 s24, v%d' % t0)
    k('v_and_b32 v%d, 15, v0' % m)
    k('v_bfe_u32 v%d, v0, 4, 2' % g)
    k('v_and_b32 v%d, 63, v0' % lane16)
    k('v_lshlrev_b32 v%d, 4, v%d' % (lane16, lane16))
    k('s_and_b32 s20, s2, 7')
    k('s_lshr_b32 s21, s2, 3')
    k('s_mul_i32 s22, s21, 0x5556')
    k('s_lshr_b32 s22, s22, 16')
    k('s_mul_i32 s23, s22, 3')
    k('s_sub_u32 s23, s21, s23')
    k('s_lshl_b32 s22, s22, 3')
    k('s_add_u32 s22, s22, s20')
    k('s_waitcnt lgkmcnt(0)')
    k('s_cmp_ge_u32 s2, 248')
    k('s_cbranch_scc1 L_%s_stat_hi' % N)
    k('s_cmp_ge_u32 s2, 216')
    k('s_cbranch_scc1 L_%s_wft' % N)
    k('s_cmp_ge_u32 s22, 68')
    k('s_cbranch_scc1 L_%s_stat_lo' % N)

    vsrc = V()
    k('s_mov_b32 s31, 0x20000')
    k('s_cmp_ge_u32 s22, 41')
    k('s_cbranch_scc1 L_%s_srcW' % N)
    k('s_mov_b32 s27, 64')
    k('s_cmp_ge_u32 s22, 32')
    k('s_cbranch_scc1 L_%s_srcO' % N)
    k('s_mov_b32 s28, s8')
    k('s_mov_b32 s29, s9')
    k('s_mov_b32 s30, 0x%x' % XTSZ)
    k('s_lshr_b32 s25, s24, 1')
    k('s_lshl_b32 s25, s25, 5')
    k('s_and_b32 s26, s24, 1')
    k('s_add_u32 s25, s25, s26')
    k('s_lshl_b32 s25, s25, 5')
    k('s_add_u32 s25, s25, s22')
    k('v_lshlrev_b32 v%d, 6, v%d' % (t0, m))
    k('v_add_u32 v%d, s25, v%d' % (t0, t0))
    k('v_mul_u32_u24 v%d, 1152, v%d' % (vsrc, t0))
    k('v_lshl_add_u32 v%d, v%d, 4, v%d' % (vsrc, g, vsrc))
    k('s_branch L_%s_dma' % N)
    k('L_%s_srcO:' % N)
    k('s_mov_b32 s28, s18')
    k('s_mov_b32 s29, s19')
    k('s_mov_b32 s30, %d' % (576 * 1152))
    k('s_sub_u32 s25, s22, 32')
    k('s_lshl_b32 s25, s25, 2')
    k('s_add_u32 s25, s25, s24')
    k('s_mul_i32 s26, s25, 0x1c72')
    k('s_lshr_b32 s26, s26, 16')
    k('s_mul_i32 s32, s26, 9')
    k('s_sub_u32 s25, s25, s32')
    k('s_lshl_b32 s25, s25, 3')
    k('s_mul_i32 s26, s26, 144')
    k('v_and_b32 v%d, 7, v%d' % (t0, m))
    k('v_add_u32 v%d, s25, v%d' % (t0, t0))
    k('v_mul_u32_u24 v%d, 0x1c72, v%d' % (t1, t0))
    k('v_lshrrev_b32 v%d, 16, v%d' % (t1, t1))
    k('v_lshrrev_b32 v%d, 3, v%d' % (t2, m))
    k('v_add_u32 v%d, v%d, v%d' % (t1, t1, t2))
    k('v_mad_u32_u24 v%d, v%d, 9, v%d' % (t0, t1, t0))
    k('v_add_u32 v%d, s26, v%d' % (t0, t0))
    k('v_mul_u32_u24 v%d, 1152, v%d' % (vsrc, t0))
    k('v_lshl_add_u32 v%d, v%d, 4, v%d' % (vsrc, g, vsrc))
    k('s_branch L_%s_dma' % N)
    k('L_%s_srcW:' % N)
    k('s_mov_b32 s27, %d' % (32 * 3456))
    k('s_mov_b32 s28, s16')
    k('s_mov_b32 s29, s17')
    k('s_mov_b32 s30, %d' % (576 * 3456))
    k('s_sub_u32 s25, s22, 41')
    k('s_lshl_b32 s25, s25, 7')
    k('s_mul_i32 s26, s24, %d' % (8 * 3456))
    k('s_add_u32 s25, s25, s26')
    k('s_and_b32 s26, s24, 1')
    k('s_lshl_b32 s26, s26, 2')
    k('v_bfe_u32 v%d, v0, 3, 3' % t0)
    k('v_and_b32 v%d, 7, v0' % t1)
    k('v_and_b32 v%d, 2, v%d' % (t2, t0))
    k('v_xor_b32 v%d, v%d, v%d' % (t1, t1, t2))
    k('v_xor_b32 v%d, s26, v%d' % (t1, t1))
    k('v_mul_u32_u24 v%d, 3456, v%d' % (vsrc, t0))
    k('v_lshl_add_u32 v%d, v%d, 4, v%d' % (vsrc, t1, vsrc))
    k('v_add_u32 v%d, s25, v%d' % (vsrc, vsrc))
    k('L_%s_dma:' % N)
    k('s_lshl_b32 s25, s24, 10')
    k('s_mov_b32 m0, s25')
    k('s_mov_b32 s26, 0')
    k.auto = False
    for i in range(18):
        k('buffer_load_dwordx4 v%d, s[28:31], s26 offen lds' % vsrc)
        if i < 17:
            k('s_add_u32 m0, m0, 4096')
            k('s_add_u32 s26, s26, s27')
    k.auto = True
    stamp(k, opts, 1)
    S = [V(24), V(24)]
    QF = [V(12), V(12)]
    KAP = V(3)
    XF = [V(16), V(16)]
    ACC = V(48)
    ff, ph, amp, ang, fg8 = V(), V(), V(), V(), V()
    k('s_mul_i32 s32, s23, 12')
    k('s_mul_i32 s33, s24, 3')
    k('s_add_u32 s32, s32, s33')
    k('s_lshl_b32 s33, s32, 4')
    k('s_mov_b32 s36, 0x3ae38e39')
    k('s_mov_b32 s37, 0x3d715bef')
    k('s_mov_b32 s38, 0x3d2aaaab')
    k('s_mov_b32 s39, 0x41c80000')
    k('s_mov_b32 s40, 0x42000000')
    k('v_cvt_f32_u32 v%d, v%d' % (fg8, g))
    k('v_mul_f32 v%d, 0x41000000, v%d' % (fg8, fg8))
    for jt in range(3):
        k('v_add_u32 v%d, s33, v%d' % (t0, m))
        if jt < 2:
            k('s_add_u32 s33, s33, 16')
        k('v_lshrrev_b32 v%d, 1, v%d' % (t1, t0))
        k('v_and_b32 v%d, 1, v%d' % (t2, t0))
        k('v_cvt_f32_u32 v%d, v%d' % (ph, t2))
        k('v_mul_f32 v%d, 0x3e800000, v%d' % (ph, ph))
        k('v_mov_b32 v%d, s37' % amp)
        if jt == 0:
            k('v_mov_b32 v%d, 0x120' % t2)
            k('v_cmp_eq_u32 vcc, 0, v%d' % t0)
            k('v_cndmask_b32 v%d, v%d, v%d, vcc' % (t1, t1, t2))
            k('v_cmp_gt_u32 vcc, 2, v%d' % t0)
            k('v_mov_b32 v%d, s38' % t2)
            k('v_cndmask_b32 v%d, v%d, v%d, vcc' % (amp, amp, t2))
            k('v_cndmask_b32 v%d, v%d, 0, vcc' % (ph, ph))
        k('v_cvt_f32_u32 v%d, v%d' % (ff, t1))
        k('v_mul_f32 v%d, s36, v%d' % (ff, ff))
        k('v_mul_f32 v%d, s40, v%d' % (KAP + jt, ff))
        k('v_cos_f32 v%d, v%d' % (KAP + jt, KAP + jt))
        k('v_fma_f32 v%d, v%d, v%d, v%d' % (ang, fg8, ff, ph))
        for u in range(2):
            for t in range(8):
                if u == 1 and t == 0:
                    k('v_fma_f32 v%d, v%d, s39, v%d' % (ang, ff, ang))
                elif t:
                    k('v_add_f32 v%d, v%d, v%d' % (ang, ff, ang))
                k('v_cos_f32 v%d, v%d' % (S[u] + 8 * jt + t, ang))
        for u in range(2):
            for t in range(8):
                k('v_mul_f32 v%d, v%d, v%d' % (S[u] + 8 * jt + t, amp, S[u] + 8 * jt + t))
        k('v_add_f32 v%d, v%d, v%d' % (KAP + jt, KAP + jt, KAP + jt))
    for j in range(48):
        k('v_mov_b32 v%d, 0' % (ACC + j))
    for j in range(12):
        k('v_cvt_pk_bf16_f32 v%d, v%d, v%d' % (QF[0] + j, S[0] + 2 * j, S[0] + 2 * j + 1))
    acc = lambda a, jt: ACC + (a * 3 + jt) * 4
    RA = V(4)
    k('s_mov_b32 s34, 0')
    k('s_waitcnt vmcnt(10)')
    k('s_barrier')
    stamp(k, opts, 2)
    k('s_cmp_ge_u32 s22, 41')
    k('s_cbranch_scc1 L_%s_loopW' % N)
    k('v_mov_b32 v%d, v%d' % (RA, lane16))
    k('s_cmp_ge_u32 s22, 32')
    k('s_cbranch_scc1 L_%s_loopO' % N)

    def loop(kind):
        def reads(buf, off):
            if kind == 'W':
                return ['ds_read_b64_tr_b16 %s, v%d offset:%d' % (vr(XF[buf] + 4 * a + 2 * hf, 2), RA + a, off + hf * 512)
                        for a in range(4) for hf in range(2)]
            return ['ds_read_b128 %s, v%d offset:%d' % (vr(XF[buf] + 4 * a, 4), RA, off + a * 1024) for a in range(4)]
        nr = 8 if kind == 'W' else 4
        k.auto = False
        for x in reads(0, 0):
            k(x)
        L = 'L_%s_body%s' % (N, kind)
        k(L + ':')
        for half in range(2):
            if half == 1:
                k('s_cmp_lg_u32 s34, 3')
                k('s_cbranch_scc1 %s_nb' % L)
                k('s_waitcnt vmcnt(0)')
                k('s_barrier')
                k('%s_nb:' % L)
            for x in reads(1 - half, 4096 * (half + 1)):
                k(x)
            k('s_waitcnt lgkmcnt(%d)' % nr)
            o = 1 - half
            fill = ['v_cvt_pk_bf16_f32 v%d, v%d, v%d' % (QF[o] + j, S[o] + 2 * j, S[o] + 2 * j + 1) for j in range(12)]
            fill += ['v_fma_f32 v%d, v%d, v%d, -v%d' % (S[half] + j, KAP + j // 8, S[o] + j, S[half] + j) for j in range(24)]
            if half == 1:
                fill += ['v_add_u32 v%d, 0x2000, v%d' % (RA + a, RA + a) for a in range(4 if kind == 'W' else 1)]
            for a in range(4):
                for jt in range(3):
                    x, q = vr(XF[half] + 4 * a, 4), vr(QF[half] + 4 * jt, 4)
                    if kind == 'O':
                        k('%s %s, %s, %s, %s' % (mf, vr(acc(a, jt), 4), x, q, vr(acc(a, jt), 4)))
                    else:
                        k('%s %s, %s, %s, %s' % (mf, vr(acc(a, jt), 4), q, x, vr(acc(a, jt), 4)))
                    for _ in range(3):
                        if fill:
                            k(fill.pop(0))
            for x in fill:
                k(x)
        k('s_add_u32 s34, s34, 1')
        k('s_cmp_lt_u32 s34, 9')
        k('s_cbranch_scc1 %s' % L)
        k('s_waitcnt lgkmcnt(0)')
        k('s_nop 7')
        k.auto = True
        stamp(k, opts, 3)
    sc = opts.get('sc', '')
    PK = XF[0]

    loop('X')
    srd(k, 28, XT0, XTSZ)
    k('s_lshl_b32 s25, s32, 16')
    k('s_lshl_b32 s26, s22, 9')
    k('s_add_u32 s25, s25, s26')
    k('v_lshlrev_b32 v%d, 14, v%d' % (t0, g))
    k('v_lshl_add_u32 v%d, v%d, 4, v%d' % (t0, m, t0))
    for jt in range(3):
        for A in range(2):
            d = PK + (jt * 2 + A) * 4
            for e in range(2):
                b = acc(2 * A + e, jt)
                k('v_cvt_pk_bf16_f32 v%d, v%d, v%d' % (d + 2 * e, b, b + 1))
                k('v_cvt_pk_bf16_f32 v%d, v%d, v%d' % (d + 2 * e + 1, b + 2, b + 3))
            k('buffer_store_dwordx4 %s, v%d, s[28:31], s25 offen offset:%d%s' % (vr(d, 4), t0, 256 * A, sc))
        if jt < 2:
            k('s_add_u32 s25, s25, 0x10000')
    k('s_branch L_%s_done' % N)

    k('L_%s_loopO:' % N)
    loop('O')
    srd(k, 28, WOT, 576 * 1152)
    srd(k, 44, WOP, 576 * 1152)
    k('s_sub_u32 s25, s22, 32')
    k('s_lshl_b32 s25, s25, 2')
    for a in range(4):
        k('s_add_u32 s26, s25, %d' % a)
        k('s_mul_i32 s33, s26, 0x1c72')
        k('s_lshr_b32 s33, s33, 16')
        k('s_mul_i32 s35, s33, 18')
        k('s_add_u32 s26, s26, s35')
        k('s_lshl_b32 s%d, s26, 10' % (50 + a))
    for jt in range(3):
        k('s_add_u32 s26, s32, %d' % jt)
        k('s_mul_i32 s33, s26, 0x2aab')
        k('s_lshr_b32 s33, s33, 16')
        k('s_mul_i32 s35, s33, 6')
        k('s_sub_u32 s35, s26, s35')
        k('s_lshr_b32 s35, s35, 1')
        k('s_mul_i32 s35, s35, 9216')
        k('s_mul_i32 s33, s33, 110592')
        k('s_add_u32 s33, s33, s35')
        k('s_and_b32 s35, s26, 1')
        k('s_lshl_b32 s41, s35, 8')
        k('s_add_u32 s%d, s33, s41' % (54 + jt))
        k('s_lshr_b32 s33, s26, 1')
        k('s_lshl_b32 s33, s33, 12')
        k('s_lshl_b32 s35, s35, 9')
        k('s_add_u32 s%d, s33, s35' % (57 + jt))
    k('v_lshrrev_b32 v%d, 1, v%d' % (t1, g))
    k('v_and_b32 v%d, 1, v%d' % (t2, g))
    k('v_lshlrev_b32 v%d, 4, v%d' % (t0, m))
    k('v_lshl_add_u32 v%d, v%d, 9, v%d' % (t0, t1, t0))
    k('v_lshl_add_u32 v%d, v%d, 3, v%d' % (t0, t2, t0))
    k('v_lshrrev_b32 v%d, 2, v%d' % (t1, m))
    k('v_lshl_add_u32 v%d, v%d, 2, v%d' % (t1, g, t1))
    k('v_bfe_u32 v%d, v%d, 1, 1' % (t2, m))
    k('v_lshl_add_u32 v%d, v%d, 4, v%d' % (t1, t2, t1))
    k('v_lshlrev_b32 v%d, 4, v%d' % (t1, t1))
    k('v_and_b32 v%d, 1, v%d' % (t2, m))
    k('v_lshl_add_u32 v%d, v%d, 3, v%d' % (t1, t2, t1))
    TRD = S[0]
    for jt in range(3):
        k('v_add_u32 v%d, s%d, v%d' % (RA + jt, 57 + jt, t1))
        for a in range(4):
            k('ds_read_b64_tr_b16 %s, v%d offset:%d' % (vr(TRD + (jt * 4 + a) * 2, 2), RA + jt, a * 1024))
    for jt in range(3):
        for a in range(4):
            d = PK + (jt * 4 + a) * 2
            b = acc(a, jt)
            k('v_cvt_pk_bf16_f32 v%d, v%d, v%d' % (d, b, b + 1))
            k('v_cvt_pk_bf16_f32 v%d, v%d, v%d' % (d + 1, b + 2, b + 3))
            k('s_add_u32 s26, s%d, s%d' % (50 + a, 54 + jt))
            k('buffer_store_dwordx2 %s, v%d, s[28:31], s26 offen' % (vr(d, 2), t0))
            k('buffer_store_dwordx2 %s, v%d, s[44:47], s26 offen' % (vr(TRD + (jt * 4 + a) * 2, 2), t0))
    k('s_branch L_%s_done' % N)

    k('L_%s_loopW:' % N)
    k('v_lshrrev_b32 v%d, 2, v%d' % (t0, m))
    k('v_lshl_add_u32 v%d, v%d, 3, v%d' % (t0, g, t0))
    k('v_lshlrev_b32 v%d, 7, v%d' % (t0, t0))
    k('v_and_b32 v%d, 3, v%d' % (t1, m))
    k('v_lshl_add_u32 v%d, v%d, 3, v%d' % (t0, t1, t0))
    k('v_lshrrev_b32 v%d, 3, v%d' % (t1, m))
    k('v_and_b32 v%d, 1, v%d' % (t2, g))
    k('v_lshl_add_u32 v%d, v%d, 1, v%d' % (t1, t2, t1))
    for a in range(4):
        k('v_xor_b32 v%d, %d, v%d' % (t2, a, t1))
        k('v_lshl_add_u32 v%d, v%d, 5, v%d' % (RA + a, t2, t0))
    loop('W')
    srd(k, 28, WQ, 16 * WQP)
    k('s_sub_u32 s25, s22, 41')
    k('s_mul_i32 s26, s25, 0x1c72')
    k('s_lshr_b32 s26, s26, 16')
    k('s_mul_i32 s33, s26, 9')
    k('s_sub_u32 s25, s25, s33')
    k('s_lshl_b32 s25, s25, 6')
    k('s_cmp_eq_u32 s26, 0')
    k('s_cselect_b32 s33, 3, s26')
    k('s_sub_u32 s33, s33, 1')
    k('s_lshl_b32 s35, s33, 11')
    k('s_lshl_b32 s41, s33, 6')
    k('s_add_u32 s41, s41, %d' % (6 * 1024 - 256))
    k('s_mov_b32 s42, %d' % WQP)
    h_, d_, hh_, lo_ = S[0], S[0] + 1, S[0] + 2, S[0] + 3
    k('v_lshrrev_b32 v%d, 1, v%d' % (t1, g))
    k('v_and_b32 v%d, 1, v%d' % (t2, g))
    k('v_lshlrev_b32 v%d, 8, v%d' % (lo_, t1))
    k('v_lshl_add_u32 v%d, v%d, 3, v%d' % (lo_, t2, lo_))
    for a in range(4):
        k('v_add_u32 v%d, s25, v%d' % (t0, m))
        if a < 3:
            k('s_add_u32 s25, s25, 16')
        k('v_mul_u32_u24 v%d, 0xe39, v%d' % (h_, t0))
        k('v_lshrrev_b32 v%d, 16, v%d' % (h_, h_))
        k('v_mul_u32_u24 v%d, 18, v%d' % (d_, h_))
        k('v_sub_u32 v%d, v%d, v%d' % (d_, t0, d_))
        k('v_and_b32 v%d, 1, v%d' % (hh_, h_))
        k('v_lshrrev_b32 v%d, 1, v%d' % (h_, h_))
        k('v_lshlrev_b32 v%d, 10, v%d' % (t1, hh_))
        k('v_add_u32 v%d, s35, v%d' % (t1, t1))
        k('v_lshlrev_b32 v%d, 5, v%d' % (t2, hh_))
        k('v_add_u32 v%d, s41, v%d' % (t2, t2))
        k('v_cmp_gt_u32 vcc, 16, v%d' % d_)
        k('v_cndmask_b32 v%d, v%d, v%d, vcc' % (t1, t2, t1))
        k('v_lshl_add_u32 v%d, v%d, 4, v%d' % (t1, d_, t1))
        k('v_mul_lo_u32 v%d, v%d, s42' % (h_, h_))
        k('v_add3_u32 v%d, v%d, v%d, v%d' % (RA + a, h_, t1, lo_))
    for jt in range(3):
        k('s_add_u32 s26, s32, %d' % jt)
        k('s_lshr_b32 s33, s26, 1')
        k('s_mul_i32 s33, s33, 7168')
        k('s_and_b32 s26, s26, 1')
        k('s_lshl_b32 s26, s26, 9')
        k('s_add_u32 s26, s26, s33')
        for a in range(4):
            d = PK + (jt * 4 + a) * 2
            b = acc(a, jt)
            k('v_cvt_pk_bf16_f32 v%d, v%d, v%d' % (d, b, b + 1))
            k('v_cvt_pk_bf16_f32 v%d, v%d, v%d' % (d + 1, b + 2, b + 3))
            k('buffer_store_dwordx2 %s, v%d, s[28:31], s26 offen' % (vr(d, 2), RA + a))
    k('s_branch L_%s_done' % N)

    k('L_%s_wft:' % N)
    k('s_waitcnt vmcnt(0) lgkmcnt(0)')
    k('s_sub_u32 s22, s2, 216')
    k('s_mov_b32 s28, s10')
    k('s_mov_b32 s29, s11')
    k('s_mov_b32 s30, %d' % (2048 * 578))
    k('s_mov_b32 s31, 0x20000')
    k('s_mov_b32 s44, s12')
    k('s_mov_b32 s45, s13')
    k('s_mov_b32 s46, %d' % (2048 * 578))
    k('s_mov_b32 s47, 0x20000')
    k('s_mul_i32 s26, s22, 36992')
    k('s_lshl_b32 s25, s24, 10')
    k('s_add_u32 s26, s26, s25')
    WIO = 40 * 1024
    k('v_add_u32 v%d, s26, v%d' % (t2, lane16))
    for i in range(10):
        k('s_mov_b32 m0, s25')
        k('buffer_load_dwordx4 v%d, s[28:31], 0 offen lds' % t2)
        k('s_add_u32 m0, m0, %d' % WIO)
        k('buffer_load_dwordx4 v%d, s[44:47], 0 offen lds' % t2)
        if i < 9:
            k('s_add_u32 s25, s25, 4096')
            k('v_add_u32 v%d, 0x1000, v%d' % (t2, t2))
    srd(k, 32, WFT, XTSZ)
    W = Alloc(10)
    rb, rb0, so = W(), W(), W()
    RE, IM = W(72), W(72)
    k('s_lshl_b32 s25, s24, 2')
    k('v_add_u32 v%d, s25, v%d' % (t0, g))
    k('v_mul_u32_u24 v%d, 2312, v%d' % (rb, m))
    k('v_lshl_add_u32 v%d, v%d, 1, v%d' % (rb, t0, rb))
    k('v_add_u32 v%d, 576, v%d' % (t1, rb))
    k('v_cmp_eq_u32 vcc, 0, v%d' % t0)
    k('v_cndmask_b32 v%d, v%d, v%d, vcc' % (rb0, rb, t1))
    k('v_lshlrev_b32 v%d, 13, v%d' % (so, t0))
    k('v_lshl_add_u32 v%d, v%d, 4, v%d' % (so, m, so))
    k('s_lshl_b32 s26, s22, 8')
    k('s_waitcnt vmcnt(0)')
    k('s_barrier')
    stamp(k, opts, 2)

    def wrd(i):
        for ii in range(4):
            k('ds_read_u16 v%d, v%d offset:%d' % (RE + 4 * i + ii, rb0 if i == 0 else rb, ii * 578 + 32 * i))
            k('ds_read_u16 v%d, v%d offset:%d' % (IM + 4 * i + ii, rb0 if i == 0 else rb, WIO + ii * 578 + 32 * i))
    wrd(0)
    for i in range(18):
        if i + 1 < 18:
            wrd(i + 1)
        for ii in range(4):
            k('v_lshl_or_b32 v%d, v%d, 16, v%d' % (RE + 4 * i + ii, IM + 4 * i + ii, RE + 4 * i + ii))
        k('buffer_store_dwordx4 %s, v%d, s[32:35], s26 offen%s' % (vr(RE + 4 * i, 4), so, sc))
        if i < 17:
            k('s_add_u32 s26, s26, 0x20000')
    k('s_branch L_%s_done' % N)

    k('L_%s_stat_hi:' % N)
    k('s_sub_u32 s22, s2, 236')
    k('s_branch L_%s_stat' % N)
    k('L_%s_stat_lo:' % N)
    k('s_sub_u32 s22, s22, 68')
    k('s_mul_i32 s22, s22, 3')
    k('s_add_u32 s22, s22, s23')
    k('L_%s_stat:' % N)
    k('s_waitcnt vmcnt(0) lgkmcnt(0)')
    k('s_mov_b32 s28, s8')
    k('s_mov_b32 s29, s9')
    k('s_mov_b32 s30, 0x%x' % XTSZ)
    k('s_mov_b32 s31, 0x20000')
    W = Alloc(10)
    xo, zo = W(), W()
    SQ, SM = W(4), W(4)
    Z = W(4)
    XR = W(144)
    k('s_lshl_b32 s25, s22, 7')
    k('s_lshl_b32 s26, s24, 5')
    k('s_add_u32 s25, s25, s26')
    k('v_bfe_u32 v%d, v0, 3, 3' % t0)
    k('v_and_b32 v%d, 7, v0' % t1)
    k('v_add_u32 v%d, s25, v%d' % (t2, t0))
    k('v_mul_u32_u24 v%d, 1152, v%d' % (xo, t2))
    k('v_lshl_add_u32 v%d, v%d, 4, v%d' % (xo, t1, xo))
    k('s_mov_b32 s26, 0')
    for grp in range(4):
        for i in range(9):
            k('buffer_load_dwordx4 %s, v%d, s[28:31], s26 offen offset:%d' % (vr(XR + (grp * 9 + i) * 4, 4), xo, 128 * i))
        if grp < 3:
            k('s_add_u32 s26, s26, %d' % (8 * 1152))
    srd(k, 32, KV1, 0x18000)
    srd(k, 36, SS2, 8192)
    srd(k, 40, SS0, 8192)
    for j in range(4):
        k('v_mov_b32 v%d, 0' % (Z + j))
    k('s_lshl_b32 s26, s22, 12')
    k('v_lshlrev_b32 v%d, 4, v0' % zo)
    k('v_add_u32 v%d, s26, v%d' % (zo, zo))
    k('v_add_u32 v%d, 0x10000, v%d' % (t2, zo))
    k('buffer_store_dwordx4 %s, v%d, s[32:35], 0 offen sc0 sc1' % (vr(Z, 4), zo))
    k('buffer_store_dwordx4 %s, v%d, s[32:35], 0 offen sc0 sc1' % (vr(Z, 4), t2))
    k('buffer_store_dwordx4 %s, v%d, s[36:39], 0 offen sc0 sc1' % (vr(Z, 4), zo))
    ones = W()
    k('v_mov_b32 v%d, 0x3f803f80' % ones)
    for grp in range(4):
        k('v_mov_b32 v%d, 0' % (SQ + grp))
        k('v_mov_b32 v%d, 0' % (SM + grp))
    for grp in range(4):
        for j in range(36):
            r = XR + grp * 36 + j
            k('v_dot2c_f32_bf16 v%d, v%d, v%d' % (SQ + grp, r, r))
            k('v_dot2c_f32_bf16 v%d, v%d, v%d' % (SM + grp, r, ones))
    for step in ('quad_perm:[1,0,3,2]', 'quad_perm:[2,3,0,1]', 'row_half_mirror'):
        for r in list(range(SQ, SQ + 4)) + list(range(SM, SM + 4)):
            k('v_add_f32_dpp v%d, v%d, v%d %s row_mask:0xf bank_mask:0xf' % (r, r, r, step))
    k('s_mov_b32 s36, 0xbae38e39')
    k('s_lshr_b32 s25, s25, 3')
    k('v_lshlrev_b32 v%d, 8, v%d' % (t0, t0))
    k('v_mov_b32 v%d, 0x%x' % (t2, OOB))
    k('v_cmp_eq_u32 vcc, 0, v%d' % t1)
    k('v_cndmask_b32 v%d, v%d, v%d, vcc' % (t0, t2, t0))
    for grp in range(4):
        k('v_mul_f32 v%d, v%d, v%d' % (SM + grp, SM + grp, SM + grp))
        k('v_fma_f32 v%d, v%d, s36, v%d' % (SQ + grp, SM + grp, SQ + grp))
        k('v_max_f32 v%d, 0, v%d' % (SQ + grp, SQ + grp))
    k('s_add_u32 s26, s25, 4096')
    for grp in range(4):
        k('buffer_store_dword v%d, v%d, s[40:43], %s offen offset:%d' % (SQ + grp, t0, 's26' if grp >= 2 else 's25', (grp & 1) * 2048))
    k('L_%s_done:' % N)
    epilogue(k, opts, tsidx)
    k.launch = dict(grid=252, block=256, lds=LDS_K1)
    return k
```

```python
from asmlib import *
from layout import *
from common import *

RS = 160
CS = 32 * RS
LDS_K2 = 8 * CS


def gen_k2(name, xin, ssin, xout, opts, tsidx):
    k = Kern(name)
    prologue(k, 144, opts)
    k('s_lshl_b32 s3, s2, 14')
    srd(k, 8, xin, 16384, extra='s3')
    srd(k, 12, xout, 16384, extra='s3')
    srd(k, 16, ssin, 8192)
    srd(k, 20, WFT, 16384, extra='s3')
    V = Alloc(1)
    m, g, t0, t1 = V(), V(), V(), V()
    k('v_and_b32 v%d, 15, v0' % m)
    k('v_bfe_u32 v%d, v0, 4, 2' % g)
    k('v_lshrrev_b32 v%d, 6, v0' % t0)
    k('v_readfirstlane_b32 s24, v%d' % t0)
    k('s_and_b32 s25, s24, 3')
    k('s_lshr_b32 s26, s24, 2')
    sp = V()
    k('s_lshl_b32 s27, s26, 10')
    k('s_lshl_b32 s28, s25, 4')
    k('s_add_u32 s27, s27, s28')
    k('v_lshlrev_b32 v%d, 6, v%d' % (sp, m))
    k('v_lshl_add_u32 v%d, v%d, 2, v%d' % (sp, g, sp))
    k('v_add_u32 v%d, s27, v%d' % (sp, sp))
    xoff, soff, woff = V(), V(), V()
    k('v_lshlrev_b32 v%d, 3, v%d' % (xoff, sp))
    k('v_lshlrev_b32 v%d, 2, v%d' % (soff, sp))
    X = V(8)
    SSr = V(4)
    k('buffer_load_dwordx4 %s, v%d, s[8:11], 0 offen' % (vr(X, 4), xoff))
    k('buffer_load_dwordx4 %s, v%d, s[8:11], 0 offen offset:16' % (vr(X + 4, 4), xoff))
    k('buffer_load_dwordx4 %s, v%d, s[16:19], 0 offen' % (vr(SSr, 4), soff))
    k1v = V()
    k('v_add_u32 v%d, s28, v%d' % (k1v, m))
    k('s_lshl_b32 s29, s26, 13')
    k('v_lshlrev_b32 v%d, 2, v%d' % (woff, k1v))
    k('v_lshl_add_u32 v%d, v%d, 10, v%d' % (woff, g, woff))
    k('v_add_u32 v%d, s29, v%d' % (woff, woff))
    k('s_movk_i32 s30, 0x1000')
    W = V(8)
    for b in range(2):
        for i in range(4):
            k('buffer_load_dword v%d, v%d, s[20:23], %s offen offset:%d' % (W + 4 * b + i, woff, 's30' if b else '0', i * 256))
    k('s_cmp_eq_u32 s2, 0')
    k('s_cselect_b32 s31, 0, 1.0')

    C1, S1, N1 = V(8), V(8), V(8)
    C2, S2, N2 = V(8), V(8), V(8)
    TC, TSn = V(8), V(8)
    UC, US = V(8), V(8)
    A = V(16)
    Bq = V(16)
    fk1, fm, fg = V(), V(), V()
    k('v_cvt_f32_u32 v%d, v%d' % (fk1, k1v))
    k('v_cvt_f32_u32 v%d, v%d' % (fm, m))
    k('v_cvt_f32_u32 v%d, v%d' % (fg, g))
    k('v_mul_f32 v%d, 0x3c800000, v%d' % (t0, fk1))
    k('v_mul_f32 v%d, 0x41000000, v%d' % (t1, fg))
    k('v_mul_f32 v%d, v%d, v%d' % (t1, t1, t0))
    for t in range(8):
        if t:
            k('v_add_f32 v%d, v%d, v%d' % (t1, t1, t0))
        k('v_cos_f32 v%d, v%d' % (A + t, t1))
        k('v_sin_f32 v%d, v%d' % (A + 8 + t, t1))
    sg = V()
    k('v_and_b32 v%d, 1, v%d' % (sg, m))
    k('s_mov_b32 s32, 0x80008000')
    k('v_mul_lo_u32 v%d, v%d, s32' % (sg, sg))
    for c in range(4):
        k('v_cvt_pk_bf16_f32 v%d, v%d, v%d' % (C1 + c, A + 2 * c, A + 2 * c + 1))
        k('v_cvt_pk_bf16_f32 v%d, v%d, v%d' % (S1 + c, A + 8 + 2 * c, A + 8 + 2 * c + 1))
    for c in range(4):
        k('v_xor_b32 v%d, s32, v%d' % (N1 + c, S1 + c))
        k('v_xor_b32 v%d, v%d, v%d' % (C1 + 4 + c, sg, C1 + c))
        k('v_xor_b32 v%d, v%d, v%d' % (S1 + 4 + c, sg, S1 + c))
        k('v_xor_b32 v%d, v%d, v%d' % (N1 + 4 + c, sg, N1 + c))
    k('v_mul_f32 v%d, 0x3a000000, v%d' % (t0, fk1))
    k('v_mul_f32 v%d, 4.0, v%d' % (t1, fg))
    k('v_mul_f32 v%d, v%d, v%d' % (t1, t1, t0))
    k('s_mov_b32 s33, 0x41500000')
    for a in range(2):
        for i in range(4):
            if a == 1 and i == 0:
                k('v_fma_f32 v%d, v%d, s33, v%d' % (t1, t0, t1))
            elif i:
                k('v_add_f32 v%d, v%d, v%d' % (t1, t1, t0))
            k('v_cos_f32 v%d, v%d' % (TC + 4 * a + i, t1))
            k('v_sin_f32 v%d, v%d' % (TSn + 4 * a + i, t1))
    k('v_mul_f32 v%d, 0x3d000000, v%d' % (t0, fm))
    k('v_mul_f32 v%d, 4.0, v%d' % (t1, fg))
    k('v_mul_f32 v%d, v%d, v%d' % (t1, t1, t0))
    for t in range(8):
        if t == 4:
            k('v_fma_f32 v%d, v%d, s33, v%d' % (t1, t0, t1))
        elif t:
            k('v_add_f32 v%d, v%d, v%d' % (t1, t1, t0))
        k('v_cos_f32 v%d, v%d' % (A + t, t1))
        k('v_sin_f32 v%d, v%d' % (A + 8 + t, t1))
    for c in range(4):
        k('v_cvt_pk_bf16_f32 v%d, v%d, v%d' % (C2 + c, A + 2 * c, A + 2 * c + 1))
        k('v_cvt_pk_bf16_f32 v%d, v%d, v%d' % (S2 + c, A + 8 + 2 * c, A + 8 + 2 * c + 1))
    k('s_mov_b32 s34, 0x80000000')
    for c in range(4):
        k('v_xor_b32 v%d, s32, v%d' % (N2 + c, S2 + c))
        k('v_xor_b32 v%d, s34, v%d' % (C2 + 4 + c, C2 + c))
        k('v_xor_b32 v%d, s34, v%d' % (S2 + 4 + c, S2 + c))
        k('v_xor_b32 v%d, s34, v%d' % (N2 + 4 + c, N2 + c))
    fb = V()
    k('v_cvt_f32_u32 v%d, s28' % fb)
    k('v_fma_f32 v%d, v%d, 4.0, v%d' % (fb, fg, fb))
    k('s_mov_b32 s35, 0x3a000000')
    for a in range(2):
        if a == 0:
            k('v_mul_f32 v%d, s35, v%d' % (t0, fm))
        else:
            k('v_add_f32 v%d, 0x3c000000, v%d' % (t0, t0))
        k('v_mul_f32 v%d, v%d, v%d' % (t1, fb, t0))
        for i in range(4):
            if i:
                k('v_add_f32 v%d, v%d, v%d' % (t1, t1, t0))
            k('v_cos_f32 v%d, v%d' % (UC + 4 * a + i, t1))
            k('v_sin_f32 v%d, v%d' % (US + 4 * a + i, t1))
    for j in range(8):
        k('v_mul_f32 v%d, s35, v%d' % (UC + j, UC + j))
        k('v_mul_f32 v%d, s35, v%d' % (US + j, US + j))

    lw = V()
    k('s_mul_i32 s27, s26, %d' % (16 * RS))
    k('s_lshl_b32 s29, s25, 5')
    k('s_add_u32 s27, s27, s29')
    k('v_mul_u32_u24 v%d, %d, v%d' % (lw, RS, m))
    k('v_lshl_add_u32 v%d, v%d, 3, v%d' % (lw, g, lw))
    k('v_add_u32 v%d, s27, v%d' % (lw, lw))
    k('s_mov_b32 s36, 0x3ae38e39')
    k('v_mov_b32 v%d, 0x3727c5ac' % t0)
    for i in range(4):
        k('v_fma_f32 v%d, v%d, s36, v%d' % (SSr + i, SSr + i, t0))
        k('v_rsq_f32 v%d, v%d' % (SSr + i, SSr + i))
    XF = V(16)
    for i in range(4):
        for h in range(2):
            k('v_lshlrev_b32 v%d, 16, v%d' % (XF + 4 * i + 2 * h, X + 2 * i + h))
            k('v_and_b32 v%d, 0xffff0000, v%d' % (XF + 4 * i + 2 * h + 1, X + 2 * i + h))
    for i in range(4):
        for c in range(4):
            k('v_mul_f32 v%d, v%d, v%d' % (A + 4 * c + i, XF + 4 * i + c, SSr + i))
    for i in range(4):
        k('v_mul_f32 v%d, s31, v%d' % (A + 4 + i, A + 4 + i))
    for c in range(4):
        k('v_cvt_pk_bf16_f32 v%d, v%d, v%d' % (Bq + 2 * c, A + 4 * c, A + 4 * c + 1))
        k('v_cvt_pk_bf16_f32 v%d, v%d, v%d' % (Bq + 2 * c + 1, A + 4 * c + 2, A + 4 * c + 3))
        k('ds_write_b64 v%d, %s offset:%d' % (lw, vr(Bq + 2 * c, 2), c * CS))
    lr1, lr6 = V(), V()
    k('v_mul_u32_u24 v%d, %d, v%d' % (lr6, RS, m))
    k('v_lshl_add_u32 v%d, v%d, 4, v%d' % (lr6, g, lr6))
    k('s_mul_i32 s27, s26, %d' % (2 * CS))
    k('v_add_u32 v%d, s27, v%d' % (lr1, lr6))
    k('s_mul_i32 s27, s26, %d' % (16 * RS))
    k('v_add_u32 v%d, s27, v%d' % (lr6, lr6))
    k('s_waitcnt lgkmcnt(0)')
    k('s_barrier')
    F = V(32)
    fr = lambda a, u, ri: F + ((a * 2 + u) * 2 + ri) * 4
    for a in range(2):
        for u in range(2):
            for ri in range(2):
                k('ds_read_b128 %s, v%d offset:%d' % (vr(fr(a, u, ri), 4), lr1, ri * CS + a * 16 * RS + u * 64))
    mf = 'v_mfma_f32_16x16x32_bf16'
    acc = lambda a, ri: A + (a * 2 + ri) * 4

    def mm(d, x, y, first):
        k('%s %s, %s, %s, %s' % (mf, vr(d, 4), vr(x, 4), vr(y, 4), '0' if first else vr(d, 4)))
    for a in range(2):
        for u in range(2):
            mm(acc(a, 0), fr(a, u, 0), C1 + 4 * u, u == 0)
            mm(acc(a, 1), fr(a, u, 1), C1 + 4 * u, u == 0)
            mm(acc(a, 0), fr(a, u, 1), S1 + 4 * u, False)
            mm(acc(a, 1), fr(a, u, 0), N1 + 4 * u, False)

    def cmul(re, im, c, s, sign, ore, oim):
        k('v_mul_f32 v%d, v%d, v%d' % (ore, im, s))
        k('v_mul_f32 v%d, v%d, v%d' % (oim, re, s))
        k('v_fma_f32 v%d, v%d, v%d, %sv%d' % (ore, re, c, '-' if sign > 0 else '', ore))
        k('v_fma_f32 v%d, v%d, v%d, %sv%d' % (oim, im, c, '' if sign > 0 else '-', oim))
    P = V(8)
    for a in range(2):
        for i in range(4):
            cmul(acc(a, 0) + i, acc(a, 1) + i, TC + 4 * a + i, TSn + 4 * a + i, -1, Bq + 4 * a + i, Bq + 8 + 4 * a + i)
    for c in range(4):
        k('v_cvt_pk_bf16_f32 v%d, v%d, v%d' % (P + c, Bq + 2 * c, Bq + 2 * c + 1))
        k('v_cvt_pk_bf16_f32 v%d, v%d, v%d' % (P + 4 + c, Bq + 8 + 2 * c, Bq + 8 + 2 * c + 1))
    for b in range(2):
        mm(acc(b, 0), C2 + 4 * b, P, True)
        mm(acc(b, 1), C2 + 4 * b, P + 4, True)
    for b in range(2):
        mm(acc(b, 0), S2 + 4 * b, P + 4, False)
        mm(acc(b, 1), N2 + 4 * b, P, False)
    for j in range(8):
        k('v_lshlrev_b32 v%d, 16, v%d' % (F + j, W + j))
        k('v_and_b32 v%d, 0xffff0000, v%d' % (F + 8 + j, W + j))
    for b in range(2):
        for i in range(4):
            cmul(acc(b, 0) + i, acc(b, 1) + i, F + 4 * b + i, F + 8 + 4 * b + i, +1, Bq + 4 * b + i, Bq + 8 + 4 * b + i)
    for c in range(4):
        k('v_cvt_pk_bf16_f32 v%d, v%d, v%d' % (P + c, Bq + 2 * c, Bq + 2 * c + 1))
        k('v_cvt_pk_bf16_f32 v%d, v%d, v%d' % (P + 4 + c, Bq + 8 + 2 * c, Bq + 8 + 2 * c + 1))
    for a in range(2):
        mm(acc(a, 0), P, C2 + 4 * a, True)
        mm(acc(a, 1), P, S2 + 4 * a, True)
    for a in range(2):
        mm(acc(a, 0), P + 4, N2 + 4 * a, False)
        mm(acc(a, 1), P + 4, C2 + 4 * a, False)
    lw2 = V()
    k('s_mul_i32 s27, s26, %d' % (2 * CS - 16 * RS))
    k('v_add_u32 v%d, s27, v%d' % (lw2, lw))
    for a in range(2):
        for i in range(4):
            cmul(acc(a, 0) + i, acc(a, 1) + i, UC + 4 * a + i, US + 4 * a + i, +1, Bq + 4 * a + i, Bq + 8 + 4 * a + i)
        for ri in range(2):
            k('v_cvt_pk_bf16_f32 v%d, v%d, v%d' % (P + 4 * a + 2 * ri, Bq + 8 * ri + 4 * a, Bq + 8 * ri + 4 * a + 1))
            k('v_cvt_pk_bf16_f32 v%d, v%d, v%d' % (P + 4 * a + 2 * ri + 1, Bq + 8 * ri + 4 * a + 2, Bq + 8 * ri + 4 * a + 3))
            k('ds_write_b64 v%d, %s offset:%d' % (lw2, vr(P + 4 * a + 2 * ri, 2), 4 * CS + ri * CS + a * 16 * RS))
    k('s_waitcnt lgkmcnt(0)')
    k('s_barrier')
    for pi in range(2):
        for u in range(2):
            for ri in range(2):
                k('ds_read_b128 %s, v%d offset:%d' % (vr(fr(pi, u, ri), 4), lr6, 4 * CS + (2 * pi + ri) * CS + u * 64))
    for pi in range(2):
        for u in range(2):
            mm(acc(pi, 0), C1 + 4 * u, fr(pi, u, 0), u == 0)
            mm(acc(pi, 1), S1 + 4 * u, fr(pi, u, 0), u == 0)
            mm(acc(pi, 0), N1 + 4 * u, fr(pi, u, 1), False)
            mm(acc(pi, 1), C1 + 4 * u, fr(pi, u, 1), False)
    for c in range(4):
        for i in range(4):
            if c == 1:
                k('v_fma_f32 v%d, v%d, s31, v%d' % (XF + 4 * i + c, A + 4 * c + i, XF + 4 * i + c))
            else:
                k('v_add_f32 v%d, v%d, v%d' % (XF + 4 * i + c, A + 4 * c + i, XF + 4 * i + c))
    for i in range(4):
        for h in range(2):
            k('v_cvt_pk_bf16_f32 v%d, v%d, v%d' % (X + 2 * i + h, XF + 4 * i + 2 * h, XF + 4 * i + 2 * h + 1))
    sc = opts.get('sc', '')
    k('buffer_store_dwordx4 %s, v%d, s[12:15], 0 offen%s' % (vr(X, 4), xoff, sc))
    k('buffer_store_dwordx4 %s, v%d, s[12:15], 0 offen offset:16%s' % (vr(X + 4, 4), xoff, sc))
    epilogue(k, opts, tsidx)
    k.launch = dict(grid=144, block=512, lds=LDS_K2)
    return k
```

```python
from asmlib import *
from layout import *
from common import *

EX = 128 * 1024
RT = EX + 16 * 1024
LDS_K3 = RT + 4 * 1024
OOB = 0x40000000


def gen_k3(name, xin, pqout, kvout, opts, tsidx):
    k = Kern(name)
    prologue(k, 256, opts)
    k('s_and_b32 s20, s2, 7')
    k('s_lshr_b32 s21, s2, 3')
    k('s_lshr_b32 s22, s20, 1')
    k('s_lshl_b32 s22, s22, 2')
    k('s_and_b32 s23, s21, 3')
    k('s_add_u32 s22, s22, s23')
    k('s_and_b32 s23, s20, 1')
    k('s_lshl_b32 s23, s23, 3')
    k('s_lshr_b32 s21, s21, 2')
    k('s_add_u32 s23, s23, s21')
    V = Alloc(1)
    m, g, t0, t1, lane16 = V(), V(), V(), V(), V()
    k('v_lshrrev_b32 v%d, 6, v0' % t0)
    k('v_readfirstlane_b32 s24, v%d' % t0)
    k('v_and_b32 v%d, 15, v0' % m)
    k('v_bfe_u32 v%d, v0, 4, 2' % g)
    k('v_and_b32 v%d, 63, v0' % lane16)
    k('v_lshlrev_b32 v%d, 4, v%d' % (lane16, lane16))
    k('s_mul_i32 s3, s23, %d' % WQP)
    srd(k, 8, xin, XTSZ)
    srd(k, 12, WQ, 128 * 1024, extra='s3')
    ao0, ao1 = V(), V()
    k('s_lshl_b32 s25, s22, 10')
    k('s_lshl_b32 s26, s24, 8')
    k('s_add_u32 s25, s25, s26')
    k('v_lshlrev_b32 v%d, 15, v%d' % (ao0, g))
    k('v_lshl_add_u32 v%d, v%d, 4, v%d' % (ao0, m, ao0))
    k('v_add_u32 v%d, s25, v%d' % (ao0, ao0))
    k('v_add_u32 v%d, 0x4000, v%d' % (ao1, ao0))
    A = V(144)
    ACC = V(56)
    BF = 0
    k('s_lshl_b32 s27, s24, 12')
    k('s_mov_b32 s28, 0')
    gtok = {}
    atok = {}

    def dma(G):
        k('s_mov_b32 m0, s27')
        for i in range(4):
            gtok[G] = k('buffer_load_dwordx4 v%d, s[12:15], s27 offen offset:%d lds' % (lane16, i * 1024))
        k('s_add_u32 s27, s27, 0x4000')

    def aload(u):
        k('buffer_load_dwordx4 %s, v%d, s[8:11], s28 offen' % (vr(A + 8 * u, 4), ao0))
        atok[u] = k('buffer_load_dwordx4 %s, v%d, s[8:11], s28 offen' % (vr(A + 8 * u + 4, 4), ao1))
        k('s_add_u32 s28, s28, 0x20000')
    gneed = lambda u: (7 * (u + 1) + 15) // 16 - 1
    u = 0
    for G in range(7):
        dma(G)
        while u < 18 and gneed(u) == G:
            aload(u)
            u += 1
    stamp(k, opts, 1)
    late = u
    srd(k, 16, pqout, XTSZ)
    srd(k, 32, kvout, KVSZ)
    ss = [V(), V()]
    k('v_mov_b32 v%d, 0' % ss[0])
    k('v_mov_b32 v%d, 0' % ss[1])
    dcm = V()
    k('v_cmp_eq_u32 vcc, 0, v%d' % g)
    k('v_mov_b32 v%d, 0xffff' % t0)
    k('v_cndmask_b32 v%d, -1, v%d, vcc' % (dcm, t0))
    stages = [int(x) for x in opts.get('k3stages', '0,1,3,5,7').split(',')]
    stage_of = lambda u: min(s for s in stages if s >= gneed(u))
    lr2 = V()
    k('v_add_u32 v%d, 0x10000, v%d' % (lr2, lane16))

    def reads(u):
        r = []
        if opts.get('nords') and u > 1:
            return r
        for t in range(7):
            off = (7 * u + t) * 1024
            base = lane16
            if off >= 0x10000:
                off -= 0x10000
                base = lr2
            r.append('ds_read_b128 %s, v%d offset:%d' % (ar(BF + (u & 1) * 28 + 4 * t, 4), base, off))
        return r

    def prep(u):
        a = A + 8 * u
        r = ['v_swap_b32 v%d, v%d' % (a + 2, a + 4), 'v_swap_b32 v%d, v%d' % (a + 3, a + 5)]
        if opts.get('noswap'):
            r = []
        if u == 0:
            r += ['v_and_b32 v%d, v%d, v%d' % (a, dcm, a), 'v_and_b32 v%d, v%d, v%d' % (a + 4, dcm, a + 4)]
        for c in range(0 if opts.get('nodot') else 4):
            r.append('v_dot2c_f32_bf16 v%d, v%d, v%d' % (ss[0], a + c, a + c))
            r.append('v_dot2c_f32_bf16 v%d, v%d, v%d' % (ss[1], a + 4 + c, a + 4 + c))
        return r
    acc = lambda a, t: ACC + (t * 2 + a) * 4
    mf = 'v_mfma_f32_16x16x32_bf16'
    k.wait_vm(gtok[stage_of(0)])
    k('s_barrier')
    stamp(k, opts, 2)
    dma(7)
    for r in reads(0) + prep(0):
        k(r)
    for uu in range(late, 18):
        aload(uu)
    for u in range(18):
        fill = []
        if u + 1 < 18:
            if stage_of(u + 1) != stage_of(u):
                k.wait_vm(gtok[stage_of(u + 1)])
                k('s_barrier')
            fill = reads(u + 1) + prep(u + 1)
        n = 0
        for t in range(7):
            for a in range(2):
                x = vr(A + 8 * u + 4 * a, 4)
                w = ar(BF + (u & 1) * 28 + 4 * t, 4)
                c = '0' if u == 0 else vr(acc(a, t), 4)
                if t < 4:
                    k('%s %s, %s, %s, %s' % (mf, vr(acc(a, t), 4), x, w, c))
                else:
                    k('%s %s, %s, %s, %s' % (mf, vr(acc(a, t), 4), w, x, c))
                n += 1
                want = (len(fill) * n + 13) // 14 if False else None
                cnt = 2 if n > 7 else 1
                for _ in range(cnt):
                    if fill:
                        k(fill.pop(0))
        while fill:
            k(fill.pop(0))
    stamp(k, opts, 3)
    T = Alloc(A, A + 144)
    r = [T(), T()]
    rl = [T(), T()]
    tmp = T()
    k('s_mov_b32 s36, 0x3ae38e39')
    k('v_mov_b32 v%d, 0x3727c5ac' % t0)
    for a in range(2):
        k('v_mov_b32 v%d, v%d' % (tmp, ss[a]))
        k('v_permlane32_swap_b32 v%d, v%d' % (ss[a], tmp))
        k('v_add_f32 v%d, v%d, v%d' % (ss[a], ss[a], tmp))
        k('v_mov_b32 v%d, v%d' % (tmp, ss[a]))
        k('v_permlane16_swap_b32 v%d, v%d' % (ss[a], tmp))
        k('v_add_f32 v%d, v%d, v%d' % (ss[a], ss[a], tmp))
        k('v_fma_f32 v%d, v%d, s36, v%d' % (ss[a], ss[a], t0))
        k('v_rsq_f32 v%d, v%d' % (r[a], ss[a]))
    rr = T(8)
    rrl = T(8)
    k('v_lshlrev_b32 v%d, 4, v%d' % (t1, g))
    for a in range(2):
        for i in range(4):
            k('ds_bpermute_b32 v%d, v%d, v%d offset:%d' % (rr + 4 * a + i, t1, r[a], 4 * i))
    LOG2E = '0x3fb8aa3b'
    for a in range(2):
        k('v_mul_f32 v%d, %s, v%d' % (rl[a], LOG2E, r[a]))
    eps6 = T()
    k('v_mov_b32 v%d, 0x358637bd' % eps6)
    e = T(8)

    def phi4(base, rs, rls):
        for i in range(4):
            k('v_mul_f32 v%d, v%d, v%d' % (e + i, base + i, rls[i]))
        for i in range(4):
            k('v_exp_f32 v%d, v%d clamp' % (e + i, e + i))
        for i in range(4):
            k('v_fma_f32 v%d, v%d, v%d, v%d' % (base + i, base + i, rs[i], eps6))
        for i in range(4):
            k('v_max_f32 v%d, v%d, v%d' % (base + i, base + i, eps6))
        for i in range(4):
            k('v_add_f32 v%d, v%d, v%d' % (base + i, base + i, e + i))
    k('v_cmp_eq_u32 s[38:39], 1, v%d' % g)
    k('v_cmp_eq_u32 s[40:41], 3, v%d' % g)
    RP = T(4)
    rw = T()
    k('s_lshl_b32 s29, s24, 10')
    k('s_add_u32 s29, s29, %d' % RT)
    k('v_lshlrev_b32 v%d, 5, v%d' % (rw, m))
    k('v_lshl_add_u32 v%d, v%d, 3, v%d' % (rw, g, rw))
    k('v_add_u32 v%d, s29, v%d' % (rw, rw))
    for a in range(2):
        b = acc(a, 6)
        for i in range(4):
            k('v_mul_f32 v%d, v%d, v%d' % (e + 4 + i, b + i, r[a]))
        phi4(b, [r[a]] * 4, [rl[a]] * 4)
        for i in range(4):
            k('v_cndmask_b32 v%d, v%d, v%d, s[38:39]' % (b + i, b + i, e + 4 + i))
            k('v_cndmask_b32 v%d, v%d, 1.0, s[40:41]' % (b + i, b + i))
        k('v_cvt_pk_bf16_f32 v%d, v%d, v%d' % (RP + 2 * a, b, b + 1))
        k('v_cvt_pk_bf16_f32 v%d, v%d, v%d' % (RP + 2 * a + 1, b + 2, b + 3))
        k('ds_write_b64 v%d, %s offset:%d' % (rw, vr(RP + 2 * a, 2), a * 512))
    for j in range(8):
        k('v_mul_f32 v%d, %s, v%d' % (rrl + j, LOG2E, rr + j))
    xw = T()
    k('s_lshl_b32 s29, s24, 12')
    k('s_add_u32 s29, s29, %d' % EX)
    k('v_add_u32 v%d, s29, v%d' % (xw, lane16))
    OP = T(16)
    for t in (2, 3, 0, 1):
        for a in range(2):
            b = acc(a, t)
            if t < 2:
                phi4(b, [rr + 4 * a + i for i in range(4)], [rrl + 4 * a + i for i in range(4)])
            else:
                for i in range(4):
                    k('v_mul_f32 v%d, v%d, v%d' % (b + i, b + i, rr + 4 * a + i))
            k('v_cvt_pk_bf16_f32 v%d, v%d, v%d' % (OP + 4 * t + 2 * a, b, b + 1))
            k('v_cvt_pk_bf16_f32 v%d, v%d, v%d' % (OP + 4 * t + 2 * a + 1, b + 2, b + 3))
        k('ds_write_b128 v%d, %s offset:%d' % (xw, vr(OP + 4 * t, 4), t * 1024))
    k('s_waitcnt lgkmcnt(0)')
    k('s_barrier')
    stamp(k, opts, 4)
    k('s_and_b32 s30, s24, 1')
    k('s_lshl_b32 s29, s30, 10')
    k('s_add_u32 s29, s29, %d' % EX)
    xr, rr2 = T(), T()
    k('v_add_u32 v%d, s29, v%d' % (xr, lane16))
    k('v_lshlrev_b32 v%d, 3, v%d' % (rr2, m))
    k('v_lshl_add_u32 v%d, v%d, 7, v%d' % (rr2, g, rr2))
    k('v_add_u32 v%d, %d, v%d' % (rr2, RT, rr2))
    PKo, Vo, Ro = T(16), T(16), T(16)
    for w in range(4):
        k('ds_read_b128 %s, v%d offset:%d' % (vr(PKo + 4 * w, 4), xr, w * 4096))
        k('ds_read_b128 %s, v%d offset:%d' % (vr(Vo + 4 * w, 4), xr, w * 4096 + 2048))
        for a in range(2):
            k('ds_read_b64_tr_b16 %s, v%d offset:%d' % (vr(Ro + 4 * w + 2 * a, 2), rr2, w * 1024 + a * 512))
    QP = T(8)
    for a in range(2):
        for hh in range(2):
            b = acc(a, 4 + hh)
            phi4(b, [r[a]] * 4, [rl[a]] * 4)
            k('v_cvt_pk_bf16_f32 v%d, v%d, v%d' % (QP + 4 * a + 2 * hh, b, b + 1))
            k('v_cvt_pk_bf16_f32 v%d, v%d, v%d' % (QP + 4 * a + 2 * hh + 1, b + 2, b + 3))
        k('v_permlane16_swap_b32 v%d, v%d' % (QP + 4 * a, QP + 4 * a + 2))
        k('v_permlane16_swap_b32 v%d, v%d' % (QP + 4 * a + 1, QP + 4 * a + 3))
    k('s_lshl_b32 s29, s22, 1')
    k('s_lshr_b32 s31, s24, 1')
    k('s_add_u32 s29, s29, s31')
    k('s_mul_i32 s29, s29, 72')
    k('s_lshr_b32 s31, s23, 2')
    k('s_mul_i32 s31, s31, 9')
    k('s_add_u32 s29, s29, s31')
    k('s_lshl_b32 s29, s29, 10')
    k('s_lshl_b32 s31, s30, 8')
    k('s_add_u32 s29, s29, s31')
    k('s_and_b32 s31, s23, 3')
    qo, qro = T(), T()
    k('v_and_b32 v%d, 1, v%d' % (t0, g))
    k('v_lshrrev_b32 v%d, 1, v%d' % (t1, g))
    k('v_lshlrev_b32 v%d, 4, v%d' % (qo, m))
    k('v_lshl_add_u32 v%d, v%d, 10, v%d' % (t0, t0, qo))
    k('v_lshl_add_u32 v%d, v%d, 9, v%d' % (t0, t1, t0))
    k('s_lshl_b32 s37, s31, 11')
    k('s_add_u32 s37, s37, s29')
    k('s_lshr_b32 s42, s31, 1')
    k('s_lshl_b32 s42, s42, 9')
    k('s_and_b32 s43, s31, 1')
    k('s_lshl_b32 s43, s43, 3')
    k('s_add_u32 s42, s42, s43')
    k('s_add_u32 s42, s42, s29')
    k('s_add_u32 s42, s42, 8192')
    k('v_add_u32 v%d, s42, v%d' % (qro, qo))
    k('v_add_u32 v%d, s37, v%d' % (qo, t0))
    k('v_cmp_eq_u32 vcc, 2, v%d' % g)
    k('v_mov_b32 v%d, 0x%x' % (t1, OOB))
    k('v_cndmask_b32 v%d, v%d, v%d, vcc' % (qro, t1, qro))
    k('s_mov_b32 s43, %d' % (36 * 1024))
    sc = opts.get('sc', '')
    for a in range(2):
        k('buffer_store_dwordx4 %s, v%d, s[16:19], %s offen%s' % (vr(QP + 4 * a, 4), qo, 's43' if a else '0', sc))
        k('buffer_store_dwordx2 %s, v%d, s[16:19], %s offen%s' % (vr(RP + 2 * a, 2), qro, 's43' if a else '0', sc))
    k('s_cmp_lt_u32 s24, 2')
    k('s_cselect_b64 s[44:45], -1, 0')
    k('s_cmp_eq_u32 s30, 1')
    k('s_cselect_b64 s[46:47], -1, 0')
    for j in range(16):
        k('v_cndmask_b32 v%d, v%d, v%d, s[44:45]' % (PKo + j, Ro + j, PKo + j))
    Ta, Tb = ACC, ACC + 4
    for w in range(4):
        k('%s %s, %s, %s, %s' % (mf, vr(Ta, 4), vr(Vo + 4 * w, 4), vr(PKo + 4 * w, 4), '0' if w == 0 else vr(Ta, 4)))
        k('%s %s, %s, %s, %s' % (mf, vr(Tb, 4), vr(Ro + 4 * w, 4), vr(PKo + 4 * w, 4), '0' if w == 0 else vr(Tb, 4)))
    co, a0, a1, a2, st = T(), T(), T(), T(), T()
    k('s_lshl_b32 s29, s23, 1')
    k('s_add_u32 s29, s29, s30')
    k('s_mul_i32 s29, s29, %d' % HS)
    k('v_and_b32 v%d, 1, v%d' % (t0, m))
    k('v_lshlrev_b32 v%d, 2, v%d' % (t0, t0))
    k('v_add_u32 v%d, 1216, v%d' % (t0, t0))
    k('v_lshrrev_b32 v%d, 1, v%d' % (co, m))
    k('v_cmp_eq_u32 vcc, s30, v%d' % co)
    k('v_cndmask_b32 v%d, v%d, v%d, vcc' % (t0, t1, t0))
    k('v_lshlrev_b32 v%d, 2, v%d' % (co, m))
    k('v_cndmask_b32 v%d, v%d, v%d, s[44:45]' % (co, t0, co))
    k('v_add_u32 v%d, s29, v%d' % (co, co))
    k('s_cmp_lt_u32 s24, 2')
    k('s_cselect_b32 s48, 6, 3')
    k('s_lshl_b32 s49, 4, s48')
    k('s_lshl_b32 s50, 8, s48')
    k('s_lshl_b32 s51, 12, s48')
    k('s_lshl_b32 s52, 16, s48')
    k('s_lshl_b32 s53, 17, s48')
    k('s_lshl_b32 s54, 18, s48')
    k('v_lshlrev_b32 v%d, s48, v%d' % (a0, g))
    k('v_add_u32 v%d, v%d, v%d' % (a0, a0, co))
    k('v_add_u32 v%d, s53, v%d' % (a2, co))
    k('v_cndmask_b32 v%d, v%d, v%d, s[38:39]' % (a2, t1, a2))
    k('v_add_u32 v%d, s54, v%d' % (a1, co))
    k('v_cndmask_b32 v%d, v%d, v%d, s[40:41]' % (a1, t1, a1))
    k('v_add_u32 v%d, s52, v%d' % (t0, co))
    k('v_cndmask_b32 v%d, v%d, v%d, s[38:39]' % (a1, a1, t0))
    stamp(k, opts, 5)
    for i in range(4):
        k('buffer_atomic_add_f32 v%d, v%d, s[32:35], %s offen' % (Ta + i, a0, ['0', 's49', 's50', 's51'][i]))
    k('v_cndmask_b32 v%d, v%d, v%d, s[46:47]' % (Tb, Tb, Tb + 2))
    k('v_cndmask_b32 v%d, v%d, v%d, s[46:47]' % (Tb + 1, Tb + 1, Tb + 3))
    k('buffer_atomic_add_f32 v%d, v%d, s[32:35], 0 offen' % (Tb, a1))
    k('buffer_atomic_add_f32 v%d, v%d, s[32:35], 0 offen' % (Tb + 1, a2))
    epilogue(k, opts, tsidx)
    k.launch = dict(grid=256, block=256, lds=LDS_K3)
    return k
```

```python
from asmlib import *
from layout import *
from common import *

PS = 25600
LDS_K4 = 4 * PS
OOB = 0x40000000
mf32 = 'v_mfma_f32_32x32x16_bf16'


def interleave(k, main, fill, per):
    fill = list(fill)
    for x in main:
        k(x)
        for _ in range(per):
            if fill:
                k(fill.pop(0))
    for x in fill:
        k(x)


def gen_k4(name, final, opts, tsidx):
    k = Kern(name)
    prologue(k, 192, opts)
    if final:
        k('s_load_dwordx2 s[6:7], s[0:1], 48')
    k('s_and_b32 s20, s2, 7')
    k('s_lshr_b32 s21, s2, 3')
    k('s_and_b32 s22, s21, 3')
    k('s_lshl_b32 s20, s20, 2')
    k('s_add_u32 s22, s22, s20')
    k('s_lshr_b32 s23, s21, 2')
    V = Alloc(1)
    mp, h2, t0, t1, lane16 = V(), V(), V(), V(), V()
    k('v_lshrrev_b32 v%d, 6, v0' % t0)
    k('v_readfirstlane_b32 s24, v%d' % t0)
    k('v_and_b32 v%d, 31, v0' % mp)
    k('v_bfe_u32 v%d, v0, 5, 1' % h2)
    k('v_and_b32 v%d, 63, v0' % lane16)
    k('v_lshlrev_b32 v%d, 4, v%d' % (lane16, lane16))
    xres = XT3 if final else XT1
    srd(k, 8, xres, XTSZ)
    k('s_mul_i32 s3, s22, 72')
    k('s_mul_i32 s25, s24, 9')
    k('s_add_u32 s3, s3, s25')
    k('s_lshl_b32 s3, s3, 10')
    srd(k, 12, PQ2 if final else PQ1, 45 * 1024, extra='s3')
    k('s_mul_i32 s3, s24, %d' % (8 * HS))
    srd(k, 16, KV2 if final else KV1, 8 * HS, extra='s3')
    k('s_lshl_b32 s3, s23, 2')
    k('s_add_u32 s3, s3, s24')
    k('s_mul_i32 s3, s3, %d' % (27 * 1024))
    srd(k, 28, WOP if final else WOT, 27 * 1024, extra='s3')
    KVR = V(80)
    O = V(72)
    OACC = V(64)
    AM = V(8)
    WE, WO_ = V(6, 2), V(6, 2)
    ACC, WF, PQ = 0, 96, 168
    for j in range(8):
        k('s_mov_b32 s%d, %d' % (56 + j, 4096 * (j + 1)))
    soff = lambda o: ('0' if o < 4096 else 's%d' % (55 + o // 4096), o % 4096)
    k('s_mov_b32 s64, %d' % (36 * 1024))
    k('s_mov_b32 s65, %d' % (40 * 1024))
    k('s_mov_b32 s66, %d' % (44 * 1024))

    if final:
        xo0, xo1 = V(), V()
        k('s_mul_i32 s25, s24, %d' % (36 * 16384))
        k('s_lshl_b32 s26, s22, 9')
        k('s_add_u32 s25, s25, s26')
        k('v_lshlrev_b32 v%d, 15, v%d' % (xo0, h2))
        k('v_lshl_add_u32 v%d, v%d, 4, v%d' % (xo0, mp, xo0))
        k('v_add_u32 v%d, 0x4000, v%d' % (xo1, xo0))
        for F in range(9):
            k('buffer_load_dwordx4 %s, v%d, s[8:11], s25 offen' % (vr(O + 8 * F, 4), xo0))
            k('buffer_load_dwordx4 %s, v%d, s[8:11], s25 offen' % (vr(O + 8 * F + 4, 4), xo1))
            if F < 8:
                k('s_add_u32 s25, s25, 0x10000')
    kvo, kr0, kr1 = V(), V(), V()
    rg, rho = KVR, KVR + 1
    k('v_lshrrev_b32 v%d, 3, v%d' % (rg, mp))
    k('v_and_b32 v%d, 3, v%d' % (t0, mp))
    k('v_lshl_add_u32 v%d, v%d, 2, v%d' % (rg, rg, t0))
    k('v_bfe_u32 v%d, v%d, 2, 1' % (t0, mp))
    k('v_mad_u32_u24 v%d, v%d, 9, v%d' % (rho, t0, rg))
    k('v_cmp_eq_u32 vcc, 9, v%d' % rg)
    k('v_cndmask_b32 v%d, v%d, 18, vcc' % (rho, rho))
    k('v_and_b32 v%d, 3, v%d' % (t0, rho))
    k('v_lshrrev_b32 v%d, 2, v%d' % (t1, rho))
    k('v_lshl_add_u32 v%d, v%d, 2, v%d' % (t0, t0, t1))
    k('v_cmp_gt_u32 vcc, 16, v%d' % rho)
    k('v_cndmask_b32 v%d, v%d, v%d, vcc' % (rho, rho, t0))
    k('v_lshlrev_b32 v%d, 6, v%d' % (kvo, rho))
    k('v_lshl_add_u32 v%d, v%d, 5, v%d' % (kvo, h2, kvo))
    k('v_lshlrev_b32 v%d, 3, v%d' % (kr0, rho))
    k('v_add_u32 v%d, 1216, v%d' % (kr0, kr0))
    k('v_mov_b32 v%d, 0x%x' % (t1, OOB))
    k('v_cmp_gt_u32 vcc, 10, v%d' % rg)
    k('v_cndmask_b32 v%d, v%d, v%d, vcc' % (kvo, t1, kvo))
    k('v_cndmask_b32 v%d, v%d, v%d, vcc' % (kr0, t1, kr0))
    k('v_cmp_eq_u32 vcc, 1, v%d' % h2)
    k('v_cndmask_b32 v%d, v%d, v%d, vcc' % (kr1, t1, kr0))
    k('v_cndmask_b32 v%d, v%d, v%d, vcc' % (kr0, kr0, t1))

    def pqload(fr, b):
        o = (fr + 36 * b) * 1024
        if o >= 36 * 1024:
            so, im = 's%d' % (64 + (o - 36 * 1024) // 4096), (o - 36 * 1024) % 4096
        else:
            so, im = soff(o)
        return 'buffer_load_dwordx4 %s, v%d, s[12:15], %s offen offset:%d' % (ar(PQ + (fr * 2 + b) * 4, 4), lane16, so, im)

    def kvload(hl):
        so, im = soff(hl * HS)
        r = []
        assert im + 16 < 4096
        base = KVR + 10 * hl
        return ['buffer_load_dwordx4 %s, v%d, s[16:19], %s offen offset:%d' % (vr(base, 4), kvo, so, im),
                'buffer_load_dwordx4 %s, v%d, s[16:19], %s offen offset:%d' % (vr(base + 4, 4), kvo, so, im + 16),
                'buffer_load_dwordx2 %s, v%d, s[16:19], %s offen offset:%d' % (vr(base + 8, 2), kr1 if hl >= 4 else kr0, so, im)]

    def wload(jt, F):
        so, im = soff((jt * 9 + F) * 1024)
        dst = (WF + (jt * 9 + F) * 4) if jt < 2 else (PQ + F * 4)
        return 'buffer_load_dwordx4 %s, v%d, s[28:31], %s offen offset:%d' % (ar(dst, 4), lane16, so, im)
    wfrag = lambda jt, F: ar((WF + (jt * 9 + F) * 4) if jt < 2 else (PQ + F * 4), 4)
    acc = lambda jt, b: ACC + (jt * 2 + b) * 16

    early = [pqload(8, 0), pqload(8, 1)]
    for hl in range(8):
        early += kvload(hl) + [pqload(hl, 0), pqload(hl, 1)]
    for j in range(6):
        k('v_mov_b32 v%d, 0' % (WE + j))
        k('v_mov_b32 v%d, 0' % (WO_ + j))

    if final:
        Q = Alloc(OACC, OACC + 64)
        S0, S1 = Q(8), Q(8)
        QF = [Q(4), Q(4)]
        df, bs, kap, ang, p0f, fix = Q(), Q(), Q(), Q(), Q(), Q()
        k('s_mov_b32 s36, 0x3ae38e39')
        k('s_mov_b32 s37, 0x3d715bef')
        k('s_mov_b32 s38, 0xc4100000')
        k('s_mul_i32 s39, s24, 72')
        k('v_lshlrev_b32 v%d, 2, v%d' % (t0, h2))
        k('v_add_u32 v%d, s39, v%d' % (t0, t0))
        k('v_cvt_f32_u32 v%d, v%d' % (p0f, t0))
        k('v_and_b32 v%d, 1, v%d' % (t0, mp))
        k('v_lshlrev_b32 v%d, 15, v%d' % (t0, t0))
        k('v_or_b32 v%d, 0x3d2b3d2b, v%d' % (fix, t0))
        k('s_cmp_eq_u32 s24, 0')
        k('s_cselect_b32 s40, -1, 0')
        k('s_mov_b32 s41, 0')
        k('s_mul_i32 s42, s23, 96')
        ei = 0
        for jt in range(3):
            pre = []
            pre.append('v_add_u32 v%d, s42, v%d' % (t0, mp))
            if jt < 2:
                pre.append('s_add_u32 s42, s42, 32')
            pre.append('v_cvt_f32_u32 v%d, v%d' % (df, t0))
            pre.append('v_mul_f32 v%d, v%d, v%d' % (bs, df, p0f))
            pre.append('v_mul_f32 v%d, s36, v%d' % (t0, bs))
            pre.append('v_floor_f32 v%d, v%d' % (t0, t0))
            pre.append('v_fma_f32 v%d, v%d, s38, v%d' % (bs, t0, bs))
            pre.append('v_mul_f32 v%d, s36, v%d' % (bs, bs))
            pre.append('v_mul_f32 v%d, s36, v%d' % (df, df))
            pre.append('v_mul_f32 v%d, 0x41000000, v%d' % (kap, df))
            pre.append('v_cos_f32 v%d, v%d' % (kap, kap))
            for F in range(2):
                S = S0 if F == 0 else S1
                for tau in range(4):
                    kk = 8 * F + tau
                    if kk == 0:
                        pre.append('v_mov_b32 v%d, v%d' % (ang, bs))
                    elif tau == 0:
                        pre.append('v_fma_f32 v%d, v%d, 4.0, v%d' % (ang, df, ang))
                        pre.append('v_add_f32 v%d, v%d, v%d' % (ang, df, ang))
                    else:
                        pre.append('v_add_f32 v%d, v%d, v%d' % (ang, df, ang))
                    pre.append('v_cos_f32 v%d, v%d' % (S + 2 * tau, ang))
                    pre.append('v_sin_f32 v%d, v%d' % (S + 2 * tau + 1, ang))
                for tau in range(4):
                    pre.append('v_mul_f32 v%d, s37, v%d' % (S + 2 * tau, S + 2 * tau))
                    pre.append('v_mul_f32 v%d, s37, -v%d' % (S + 2 * tau + 1, S + 2 * tau + 1))
            pre.append('v_add_f32 v%d, v%d, v%d' % (kap, kap, kap))
            for x in pre:
                k(x)
            for F in range(9):
                S = S0 if F % 2 == 0 else S1
                Sn = S1 if F % 2 == 0 else S0
                qf = QF[F % 2]
                for c in range(4):
                    k('v_cvt_pk_bf16_f32 v%d, v%d, v%d' % (qf + c, S + 2 * c, S + 2 * c + 1))
                if F == 0:
                    k('v_cndmask_b32 v%d, v%d, v%d, s[40:41]' % (qf, qf, fix))
                if jt == 0:
                    k('v_swap_b32 v%d, v%d' % (O + 8 * F + 2, O + 8 * F + 4))
                    k('v_swap_b32 v%d, v%d' % (O + 8 * F + 3, O + 8 * F + 5))
                upd = []
                if F + 2 < 9:
                    upd = ['v_fma_f32 v%d, v%d, v%d, -v%d' % (S + c, kap, Sn + c, S + c) for c in range(8)]
                for b in range(2):
                    k('%s %s, %s, %s, %s' % (mf32, ar(acc(jt, b), 16), vr(qf, 4), vr(O + 8 * F + 4 * b, 4),
                                             '0' if F == 0 else ar(acc(jt, b), 16)))
                    for x in upd[4 * b:4 * b + 4]:
                        k(x)
                    if ei < len(early):
                        k(early[ei])
                        ei += 1
        for x in early[ei:]:
            k(x)
    else:
        for x in early:
            k(x)
    stamp(k, opts, 1)
    wl = [wload(jt, F) for jt in range(2) for F in range(9)]
    eps6 = V()
    k('v_mov_b32 v%d, 0x358637bd' % eps6)
    ov = lambda b, v: O + 36 * b + v // 2

    def norm(hl):
        r = []
        for b in range(2):
            a = OACC + ((hl & 1) * 2 + b) * 16
            r.append('v_add_f32 v%d, v%d, v%d' % (a + 9, a + 9, eps6))
            r.append('v_rcp_f32 v%d, v%d' % (a + 9, a + 9))
        for b in range(2):
            a = OACC + ((hl & 1) * 2 + b) * 16
            pa = OACC + (((hl - 1) & 1) * 2 + b) * 16
            for i in range(9):
                dst = a + i
                if hl % 2 == 0 and i == 8:
                    dst = carry[b]
                r.append('v_mul_f32 v%d, v%d, v%d' % (dst, a + i, a + 9))
            if hl % 2 == 0:
                for c in range(4):
                    r.append('v_cvt_pk_bf16_f32 v%d, v%d, v%d' % (ov(b, 9 * hl + 2 * c), a + 2 * c, a + 2 * c + 1))
            else:
                r.append('v_cvt_pk_bf16_f32 v%d, v%d, v%d' % (ov(b, 9 * hl - 1), carry[b], a))
                for c in range(4):
                    r.append('v_cvt_pk_bf16_f32 v%d, v%d, v%d' % (ov(b, 9 * hl + 1 + 2 * c), a + 1 + 2 * c, a + 2 + 2 * c))
        return r
    carry = [t0, t1]

    def cvtkv(hl):
        base = KVR + 10 * hl
        am = AM + 4 * (hl & 1)
        r = ['v_cvt_pk_bf16_f32 v%d, v%d, v%d' % (am + c, base + 2 * c, base + 2 * c + 1) for c in range(4)]
        pos = WE + 2 if hl % 2 == 0 else WO_ + 3
        r.append('v_cvt_pk_bf16_f32 v%d, v%d, v%d' % (pos, base + 8, base + 9))
        return r

    def omf(hl):
        am = AM + 4 * (hl & 1)
        c = hl & 3
        rs = (WE + 2 - c) if c % 2 == 0 else (WO_ + 3 - c)
        r = []
        for b in range(2):
            a = OACC + ((hl & 1) * 2 + b) * 16
            r.append('%s %s, %s, %s, 0' % (mf32, vr(a, 16), vr(am, 4), ar(PQ + (hl * 2 + b) * 4, 4)))
        for b in range(2):
            a = OACC + ((hl & 1) * 2 + b) * 16
            r.append('%s %s, %s, %s, %s' % (mf32, vr(a, 16), vr(rs, 4), ar(PQ + (16 + b) * 4, 4), vr(a, 16)))
        return r
    for x in cvtkv(0):
        k(x)
    wi = 0
    for hl in range(8):
        fill = []
        if hl > 0:
            fill += norm(hl - 1)
        if hl < 7:
            fill += cvtkv(hl + 1)
        n = 3 if hl < 2 else 2
        fill = wl[wi:wi + n] + fill
        wi += n
        interleave(k, omf(hl), fill, 6)
    assert wi >= len(wl)
    for F in range(9):
        k(wload(2, F))
    for x in norm(7):
        k(x)
    stamp(k, opts, 2)
    E = Alloc(KVR, KVR + 80)
    RES = E(12)
    xo = E()
    if not final:
        k('s_mul_i32 s25, s23, 24')
        k('s_lshl_b32 s26, s24, 1')
        k('s_add_u32 s25, s25, s26')
        k('s_lshl_b32 s25, s25, 14')
        k('s_lshl_b32 s26, s22, 9')
        k('s_add_u32 s25, s25, s26')
        k('v_lshlrev_b32 v%d, 14, v%d' % (xo, h2))
        k('v_lshl_add_u32 v%d, v%d, 4, v%d' % (xo, mp, xo))
        k('v_add_u32 v%d, s25, v%d' % (xo, xo))
        k('s_mov_b32 s44, 0x20000')
        k('s_mov_b32 s45, 0x40000')
        for it in range(3):
            k('buffer_load_dwordx4 %s, v%d, s[8:11], %s offen' % (vr(RES + 4 * it, 4), xo, ['0', 's44', 's45'][it]))
    pw = E()
    k('s_mul_i32 s25, s24, %d' % PS)
    k('v_mul_u32_u24 v%d, 400, v%d' % (pw, mp))
    k('v_lshl_add_u32 v%d, v%d, 4, v%d' % (pw, h2, pw))
    k('v_add_u32 v%d, s25, v%d' % (pw, pw))

    def pwrites(jt):
        return ['ds_write_b128 v%d, %s offset:%d' % (pw, ar(acc(jt, b) + 4 * jj, 4), b * 12800 + jt * 128 + jj * 32)
                for b in range(2) for jj in range(4)]
    for jt in range(3):
        mm = []
        for F in range(9):
            for b in range(2):
                c = '0' if (F == 0 and not final) else ar(acc(jt, b), 16)
                mm.append('%s %s, %s, %s, %s' % (mf32, ar(acc(jt, b), 16), wfrag(jt, F), vr(O + 36 * b + 4 * F, 4), c))
        if jt == 0:
            interleave(k, mm, [], 1)
        else:
            for x in mm[:6]:
                k(x)
            interleave(k, mm[6:], pwrites(jt - 1), 1)
    for x in pwrites(2):
        k(x)
    stamp(k, opts, 3)
    k('s_waitcnt lgkmcnt(0)')
    k('s_barrier')
    stamp(k, opts, 4)
    sc = opts.get('sc', '')
    R = Alloc(O, O + 72 + 64)
    P = R(96)
    if not final:
        pr, pr2 = E(), E()
        k('s_lshl_b32 s25, s24, 5')
        k('v_mul_u32_u24 v%d, 400, v%d' % (pr, mp))
        k('v_lshl_add_u32 v%d, v%d, 4, v%d' % (pr, h2, pr))
        k('v_add_u32 v%d, s25, v%d' % (pr, pr))
        k('v_add_u32 v%d, %d, v%d' % (pr2, 2 * PS, pr))
        for it in range(3):
            for b in range(2):
                for w in range(4):
                    k('ds_read_b128 %s, v%d offset:%d' % (vr(P + ((it * 2 + b) * 4 + w) * 4, 4), pr if w < 2 else pr2,
                                                          (w & 1) * PS + b * 12800 + it * 128))
        srd(k, 32, XT2, XTSZ)
        srd(k, 36, SS2, 8192)
        ss = [E(), E()]
        XF = E(8)
        k('s_add_u32 s25, s23, s24')
        k('s_cmp_eq_u32 s25, 0')
        k('s_cselect_b32 s40, -1, 0')
        k('s_mov_b32 s41, 0')
        for it in range(3):
            for b in range(2):
                p = P + (it * 2 + b) * 16
                for h in range(2):
                    k('v_lshlrev_b32 v%d, 16, v%d' % (XF + 4 * b + 2 * h, RES + 4 * it + 2 * b + h))
                    k('v_and_b32 v%d, 0xffff0000, v%d' % (XF + 4 * b + 2 * h + 1, RES + 4 * it + 2 * b + h))
                for c in range(4):
                    k('v_add_f32 v%d, v%d, v%d' % (p + c, p + c, p + 4 + c))
                    k('v_add_f32 v%d, v%d, v%d' % (p + 8 + c, p + 8 + c, p + 12 + c))
                for c in range(4):
                    k('v_add_f32 v%d, v%d, v%d' % (p + c, p + c, XF + 4 * b + c))
                for c in range(4):
                    k('v_add_f32 v%d, v%d, v%d' % (p + c, p + c, p + 8 + c))
                for h in range(2):
                    k('v_cvt_pk_bf16_f32 v%d, v%d, v%d' % (RES + 4 * it + 2 * b + h, p + 2 * h, p + 2 * h + 1))
                if it == 0:
                    k('v_cndmask_b32 v%d, v%d, 0, s[40:41]' % (p + 1, p + 1))
                for c in range(4):
                    if it == 0 and c == 0:
                        k('v_mul_f32 v%d, v%d, v%d' % (ss[b], p, p))
                    else:
                        k('v_fmac_f32 v%d, v%d, v%d' % (ss[b], p + c, p + c))
            k('buffer_store_dwordx4 %s, v%d, s[32:35], %s offen%s' % (vr(RES + 4 * it, 4), xo, ['0', 's44', 's45'][it], sc))
        k('v_permlane32_swap_b32 v%d, v%d' % (ss[0], ss[1]))
        k('v_add_f32 v%d, v%d, v%d' % (ss[0], ss[0], ss[1]))
        k('s_lshl_b32 s25, s22, 8')
        k('v_lshlrev_b32 v%d, 3, v%d' % (t0, mp))
        k('v_lshl_add_u32 v%d, v%d, 2, v%d' % (t0, h2, t0))
        k('buffer_atomic_add_f32 v%d, v%d, s[36:39], s25 offen' % (ss[0], t0))
    else:
        k('s_mov_b32 s32, s6')
        k('s_mov_b32 s33, s7')
        k('s_mov_b32 s34, 0x%x' % XTSZ)
        k('s_mov_b32 s35, 0x20000')
        pr, oo = E(3), E(3)
        row, ch = E(), E()
        k('s_mov_b32 s44, 0x5556')
        k('s_mul_i32 s25, s22, 1152')
        k('s_mul_i32 s26, s23, 192')
        k('s_add_u32 s25, s25, s26')
        k('s_mov_b32 s45, %d' % (64 * 1152))
        k('s_mov_b32 s46, %d' % (32 * 1152))
        for it in range(3):
            k('v_add_u32 v%d, %d, v0' % (t0, 256 * it))
            k('v_mul_u32_u24 v%d, s44, v%d' % (row, t0))
            k('v_lshrrev_b32 v%d, 18, v%d' % (row, row))
            k('v_mul_u32_u24 v%d, 12, v%d' % (ch, row))
            k('v_sub_u32 v%d, v%d, v%d' % (ch, t0, ch))
            k('v_mul_u32_u24 v%d, 400, v%d' % (pr + it, row))
            k('v_lshl_add_u32 v%d, v%d, 5, v%d' % (pr + it, ch, pr + it))
            k('v_and_b32 v%d, 31, v%d' % (t0, row))
            k('v_lshrrev_b32 v%d, 5, v%d' % (t1, row))
            k('v_mul_lo_u32 v%d, v%d, s45' % (t0, t0))
            k('v_mul_lo_u32 v%d, v%d, s46' % (t1, t1))
            k('v_lshlrev_b32 v%d, 4, v%d' % (oo + it, ch))
            k('v_add3_u32 v%d, v%d, v%d, v%d' % (oo + it, oo + it, t0, t1))
            k('v_add_u32 v%d, %d, v%d' % (t0, 2 * PS, pr + it))
            for w in range(4):
                for hh in range(2):
                    k('ds_read_b128 %s, v%d offset:%d' % (vr(P + ((it * 2 + hh) * 4 + w) * 4, 4), (pr + it) if w < 2 else t0,
                                                          (w & 1) * PS + hh * 16))
        for it in range(3):
            for hh in range(2):
                p = P + (it * 2 + hh) * 16
                for c in range(4):
                    k('v_add_f32 v%d, v%d, v%d' % (p + c, p + c, p + 4 + c))
                    k('v_add_f32 v%d, v%d, v%d' % (p + 8 + c, p + 8 + c, p + 12 + c))
                for c in range(4):
                    k('v_add_f32 v%d, v%d, v%d' % (p + c, p + c, p + 8 + c))
                for h in range(2):
                    k('v_cvt_pk_bf16_f32 v%d, v%d, v%d' % (RES + 4 * it + 2 * hh + h, p + 2 * h, p + 2 * h + 1))
            k('buffer_store_dwordx4 %s, v%d, s[32:35], s25 offen' % (vr(RES + 4 * it, 4), oo + it))
    epilogue(k, opts, tsidx)
    k.launch = dict(grid=192, block=256, lds=LDS_K4)
    return k
```

```python
XTSZ = 0x240000
XT0 = 0x000000
XT1 = 0x240000
XT2 = 0x480000
XT3 = 0x6C0000
PQ1 = 0x900000
PQ2 = 0xB40000
WFT = 0xD80000
WQ = 0xFC0000
WQP = 126 * 1024
WOT = 0x11C0000
WOP = 0x1268000
KV1 = 0x1310000
KV2 = 0x131C000
HS = 1408
KVSZ = 32 * HS
SS0 = 0x1328000
SS2 = 0x132A000
TS = 0x1400000
WS_USED = 0x1500000
```

```python
import sys
from common import *
from k2 import gen_k2

def main():
    opts = {}
    which = 'all'
    out = 'interleave_layers__spectral_gfnet__linear_attn_block__prompt.s'
    for a in sys.argv[1:]:
        if a.startswith('-o'):
            out = a[2:]
        elif a.startswith('k='):
            which = a[2:]
        elif '=' in a:
            x, y = a.split('=', 1)
            opts[x] = y
        else:
            opts[a] = True
    if opts.get('sc'):
        opts['sc'] = ' ' + opts['sc'].replace('_', ' ')
    ks = []
    sel = which.split(',') if which != 'all' else ['1', '2', '3', '4', '5', '6', '7']
    cache = {}
    for n in sel:
        i = len(ks)
        if n in cache:
            ks.append(cache[n])
            continue
        if n == '1':
            from k1 import gen_k1
            ks.append(gen_k1('k1_kernel', opts, i))
        if n == '2':
            ks.append(gen_k2('k2_kernel', XT0, SS0, XT1, opts, i))
        if n == '5':
            ks.append(gen_k2('k5_kernel', XT2, SS2, XT3, opts, i))
        if n == '3':
            from k3 import gen_k3
            ks.append(gen_k3('k3_kernel', XT1, PQ1, KV1, opts, i))
        if n == '6':
            from k3 import gen_k3
            ks.append(gen_k3('k6_kernel', XT3, PQ2, KV2, opts, i))
        if n == '4':
            from k4 import gen_k4
            ks.append(gen_k4('k4_kernel', False, opts, i))
        if n == '7':
            from k4 import gen_k4
            ks.append(gen_k4('k7_kernel', True, opts, i))
        cache[n] = ks[-1]
    open(out, 'w').write(build_file(ks))
    for k in ks:
        print(k.name, 'insts', len(k.out), 'regs', k.maxregs())

main()
```

```python
import sys
from common import *
from k2 import gen_k2

def main():
    opts = {}
    which = 'all'
    out = 'interleave_layers__spectral_gfnet__linear_attn_block__prompt.s'
    for a in sys.argv[1:]:
        if a.startswith('-o'):
            out = a[2:]
        elif a.startswith('k='):
            which = a[2:]
        elif '=' in a:
            x, y = a.split('=', 1)
            opts[x] = y
        else:
            opts[a] = True
    if opts.get('sc'):
        opts['sc'] = ' ' + opts['sc'].replace('_', ' ')
    ks = []
    sel = which.split(',') if which != 'all' else ['1', '2', '3', '4', '5', '6', '7']
    cache = {}
    for n in sel:
        i = len(ks)
        if n in cache:
            ks.append(cache[n])
            continue
        if n == '1':
            from k1 import gen_k1
            ks.append(gen_k1('k1_kernel', opts, i))
        if n == 'e':
            ke = Kern('empty_kernel')
            ke('s_endpgm')
            ke.launch = dict(grid=256, block=256, lds=0)
            ks.append(ke)
        if n == '2':
            ks.append(gen_k2('k2_kernel', XT0, SS0, XT1, opts, i))
        if n == '5':
            ks.append(gen_k2('k5_kernel', XT2, SS2, XT3, opts, i))
        if n == '3':
            from k3 import gen_k3
            ks.append(gen_k3('k3_kernel', XT1, PQ1, KV1, opts, i))
        if n == '6':
            from k3 import gen_k3
            ks.append(gen_k3('k6_kernel', XT3, PQ2, KV2, opts, i))
        if n == '4':
            from k4 import gen_k4
            ks.append(gen_k4('k4_kernel', False, opts, i))
        if n == '7':
            from k4 import gen_k4
            ks.append(gen_k4('k7_kernel', True, opts, i))
        cache[n] = ks[-1]
    open(out, 'w').write(build_file(ks))
    for k in ks:
        print(k.name, 'insts', len(k.out), 'regs', k.maxregs())

main()
```
